```python
import torch

def _softmax(x, axis=-1):
    return torch.softmax(x, dim=axis)
def _gelu(x):
    return torch.nn.functional.gelu(x, approximate="tanh")
def _silu(x):
    return torch.nn.functional.silu(x)
def _sigmoid(x):
    return torch.sigmoid(x)
def _layernorm(x, axis=-1, eps=1e-5):
    m = x.mean(dim=axis, keepdim=True)
    v = x.var(dim=axis, keepdim=True, unbiased=False)
    return (x - m) / torch.sqrt(v + eps)
def _scatter_add(tgt, idx, src, axis=0):
    return tgt.clone().index_add_(axis, idx, src)
def _segment_sum(src, seg, n):
    out = torch.zeros((n,) + src.shape[1:], dtype=src.dtype)
    return out.index_add_(0, seg, src)
def _pad(x, pw):
    flat = tuple(v for pair in reversed(pw) for v in pair)
    return torch.nn.functional.pad(x, flat)

kernel_name = 'interleave_layers__softmax_full_mha__mixer_s_mlp__prompt'

def setup_inputs():

    _w = (lambda a: (lambda t: t.to(torch.bfloat16) if t.is_floating_point() else t)(torch.as_tensor(a)))
    def _A_setup():
        B, S, D = 1, 2048, 512
        return {
            "x": _w((lambda *s: torch.randn(*s, dtype=torch.bfloat16) * 0.05)(B, S, D)),
            "wqkv": _w((lambda *s: torch.randn(*s, dtype=torch.bfloat16) * 0.05)(D, 3 * D)),
            "wo": _w((lambda *s: torch.randn(*s, dtype=torch.bfloat16) * 0.05)(D, D)),
        }
    _A_in = _A_setup()

    def _B_setup():
        B, S, D, F = 1, 2048, 512, 1792
        return {
            "x":  _w((lambda *s: torch.randn(*s, dtype=torch.bfloat16) * 0.05)(B, S, D)),
            "w1": _w((lambda *s: torch.randn(*s, dtype=torch.bfloat16) * 0.8)(D, D) * (D ** -0.5)),
            "w2": _w((lambda *s: torch.randn(*s, dtype=torch.bfloat16) * 0.8)(D, D) * (D ** -0.5)),
            "w3": _w((lambda *s: torch.randn(*s, dtype=torch.bfloat16) * 0.8)(D, F) * (D ** -0.5)),
            "w4": _w((lambda *s: torch.randn(*s, dtype=torch.bfloat16) * 0.8)(F, D) * (F ** -0.5)),
        }
    _B_in = _B_setup()

    return {
        "A_x": _A_in["x"],
        "A_wqkv": _A_in["wqkv"],
        "A_wo": _A_in["wo"],
        "B_x": _B_in["x"],
        "B_w1": _B_in["w1"],
        "B_w2": _B_in["w2"],
        "B_w3": _B_in["w3"],
        "B_w4": _B_in["w4"],
    }

def reference(A_x, A_wqkv, A_wo, B_x, B_w1, B_w2, B_w3, B_w4):
    def _A_ref(x, wqkv, wo):
        B, S, D = x.shape
        H = 32; Dh = D // H
        qkv = (lambda x, *d: x.permute(*d))((x @ wqkv).reshape(B, S, 3, H, Dh), 2, 0, 3, 1, 4)
        q, k, v = qkv[0], qkv[1], qkv[2]
        scale = Dh ** -0.5
        scores = torch.einsum("bhqd,bhkd->bhqk", q, k) * scale
        p = _softmax(scores, axis=-1)
        o = torch.einsum("bhqk,bhkd->bhqd", p, v)
        return (lambda x, *d: x.permute(*d))(o, 0, 2, 1, 3).reshape(B, S, D) @ wo

    def _B_ref(x, w1, w2, w3, w4):
        B, S, D = x.shape
        h = _gelu(_layernorm(x, axis=-1) @ w1)
        c = D // 4
        g0 = _pad(h[:, :, 0*c:1*c], ((0, 0), (1, 0), (0, 0)))[:, :S, :]
        g1 = _pad(h[:, :, 1*c:2*c], ((0, 0), (0, 1), (0, 0)))[:, 1:, :]
        g2 = _pad(h[:, :, 2*c:3*c], ((0, 0), (2, 0), (0, 0)))[:, :S, :]
        g3 = _pad(h[:, :, 3*c:   ], ((0, 0), (0, 2), (0, 0)))[:, 2:, :]
        hs = torch.concatenate([g0, g1, g2, g3], axis=-1) @ w2
        x1 = x + hs
        h2 = _gelu(_layernorm(x1, axis=-1) @ w3) @ w4
        return x1 + h2

    x = A_x
    x = x + _A_ref(_layernorm(x, axis=-1), A_wqkv, A_wo)
    x = x + _B_ref(_layernorm(x, axis=-1), B_w1, B_w2, B_w3, B_w4)
    x = x + _A_ref(_layernorm(x, axis=-1), A_wqkv, A_wo)
    x = x + _B_ref(_layernorm(x, axis=-1), B_w1, B_w2, B_w3, B_w4)
    return x
```

```python
import re

_RANGE = re.compile(r'^(-?)(\|?)([vsa])\[(\d+):(\d+)\]\|?$')
_SINGLE = re.compile(r'^(-?)(\|?)([vsa])(\d+)\|?$')

def regs_of(op):
    op = op.strip()
    op = re.sub(r'^abs\((.*)\)$', r'\1', op.lstrip('-')) if 'abs(' in op else op
    m = _RANGE.match(op)
    if m:
        return [(m.group(3), i) for i in range(int(m.group(4)), int(m.group(5)) + 1)]
    m = _SINGLE.match(op)
    if m:
        return [(m.group(3), int(m.group(4)))]
    if op in ('vcc',):
        return [('s', 106), ('s', 107)]
    if op == 'vcc_lo': return [('s', 106)]
    if op == 'vcc_hi': return [('s', 107)]
    if op == 'exec': return [('s', 126), ('s', 127)]
    if op == 'exec_lo': return [('s', 126)]
    if op == 'exec_hi': return [('s', 127)]
    if op == 'm0': return [('s', 124)]
    return []

TRANS = ('v_exp_f32', 'v_log_f32', 'v_rcp_f32', 'v_rsq_f32', 'v_sqrt_f32', 'v_sin_f32', 'v_cos_f32', 'v_rcp_iflag_f32')

class Ins:
    __slots__ = ('text', 'mn', 'ops', 'defs', 'uses', 'kind', 'states', 'srcc', 'is_label', 'lds_dma', 'wide_store')
    def __init__(self, text):
        self.text = text
        t = text.split(';')[0].strip()
        self.is_label = t.endswith(':')
        self.defs = []; self.uses = []; self.srcc = []
        self.states = 1; self.lds_dma = False; self.wide_store = False
        if self.is_label or not t or t.startswith('.'):
            self.mn = ''; self.ops = []; self.kind = 'none'; self.states = 0
            return
        sp = t.split(None, 1)
        self.mn = sp[0]
        rest = sp[1] if len(sp) > 1 else ''
        ops = []; cur = ''; depth = 0
        for ch in rest:
            if ch in '[(': depth += 1
            if ch in '])': depth -= 1
            if ch == ',' and depth == 0:
                ops.append(cur.strip()); cur = ''
            else:
                cur += ch
        if cur.strip(): ops.append(cur.strip())
        mods = []
        if ops:
            parts = ops[-1].split()
            ops[-1] = parts[0]; mods = parts[1:]
        self.ops = ops
        mn = self.mn
        R = lambda i: regs_of(ops[i]) if i < len(ops) else []
        allr = lambda a: sum((regs_of(o) for o in ops[a:]), [])
        if mn.startswith('v_mfma') or mn.startswith('v_smfmac'):
            self.kind = 'mfma'
            self.defs = R(0); self.uses = R(1) + R(2) + R(3); self.srcc = R(3)
        elif mn.startswith('v_cmp'):
            self.kind = 'valu'
            self.defs = R(0); self.uses = allr(1)
            if mn.startswith('v_cmpx'): self.defs += regs_of('exec')
        elif mn.startswith('v_readfirstlane') or mn.startswith('v_readlane'):
            self.kind = 'valu'; self.defs = R(0); self.uses = allr(1)
        elif mn.startswith('v_permlane'):
            self.kind = 'valu'; self.defs = R(0) + R(1); self.uses = R(0) + R(1)
        elif mn.startswith('v_'):
            self.kind = 'trans' if any(mn.startswith(x) for x in TRANS) else 'valu'
            self.defs = R(0); self.uses = allr(1)
            if '_co_' in mn or mn.startswith('v_div_scale') or mn.startswith('v_mad_u64'):
                self.defs += R(1); self.uses = allr(2)
            if mn.startswith('v_fmac') or mn.startswith('v_pk_fmac') or mn.startswith('v_dot2c') or mn.startswith('v_writelane'):
                self.uses += R(0)
            if mn.startswith('v_cndmask') and len(ops) == 3:
                self.uses += regs_of('vcc')
            if any('UNUSED_PRESERVE' in m for m in mods): self.uses += R(0)
        elif mn.startswith('ds_'):
            self.kind = 'ds'
            if mn.startswith('ds_read') or mn.startswith('ds_bpermute') or mn.startswith('ds_permute') or mn.startswith('ds_swizzle'):
                self.defs = R(0); self.uses = allr(1)
            else:
                self.uses = allr(0)
        elif mn.startswith('buffer_') or mn.startswith('global_'):
            self.kind = 'vmem'
            lds = 'lds' in mods or '_lds_' in mn
            if mn.startswith('buffer_inv') or mn.startswith('buffer_wbl2'):
                pass
            elif 'load' in mn and not lds:
                self.defs = R(0); self.uses = allr(1)
            elif lds:
                self.lds_dma = True; self.uses = allr(0) + regs_of('m0')
            elif 'atomic' in mn:
                self.uses = allr(0)
                if 'sc0' in mods: self.defs = R(0)
            else:
                self.uses = allr(0)
                if 'x4' in mn or 'x3' in mn: self.wide_store = True
        elif mn == 's_nop':
            self.kind = 'nop'; self.states = int(ops[0], 0) + 1
        elif mn.startswith('s_waitcnt') or mn in ('s_barrier', 's_endpgm', 's_setprio', 's_sleep'):
            self.kind = 'salu'
        elif mn.startswith('s_cbranch') or mn == 's_branch':
            self.kind = 'branch'
            if 'vcc' in mn: self.uses = regs_of('vcc')
            if 'exec' in mn: self.uses = regs_of('exec')
        elif mn.startswith('s_cmp') or mn.startswith('s_bitcmp'):
            self.kind = 'salu'; self.uses = allr(0)
        elif mn.startswith('s_load') or mn.startswith('s_buffer_load') or mn.startswith('s_memtime') or mn.startswith('s_memrealtime'):
            self.kind = 'smem'; self.defs = R(0); self.uses = allr(1)
        elif mn.startswith('s_'):
            self.kind = 'salu'; self.defs = R(0); self.uses = allr(1)
            if 'saveexec' in mn:
                self.defs += regs_of('exec'); self.uses += regs_of('exec')
        else:
            raise ValueError('unknown instruction: ' + text)

def V(ins_regs): return set(n for k, n in ins_regs if k in ('v',))
def S(ins_regs): return set(n for k, n in ins_regs if k == 's')

def required_gap(p, c):
    need = 0
    pvd = V(p.defs); psd = S(p.defs)
    cvu = V(c.uses); cvd = V(c.defs); csu = S(c.uses)
    pv = p.kind in ('valu', 'trans')
    cv = c.kind in ('valu', 'trans')
    if p.kind == 'mfma':
        passes = 8 if '32x32' in p.mn else 4
        raw = {8: 12, 4: 8}[passes]
        if c.kind == 'mfma':
            cc = V(c.srcc); ab = V(regs_of(c.ops[1]) + regs_of(c.ops[2]))
            if pvd & ab: need = max(need, raw)
            if pvd & cc:
                same = (V(c.srcc) == pvd) and (('32x32' in c.mn) == ('32x32' in p.mn))
                if not same: need = max(need, {8: 10, 4: 6}[passes])
            if (pvd & cvd) and not (pvd & cc): need = max(need, raw)
        else:
            if c.kind in ('valu', 'trans', 'vmem', 'ds'):
                if pvd & (cvu | cvd): need = max(need, raw)
            if cv and (V(p.srcc) & cvd): need = max(need, {8: 7, 4: 3}[passes])
    if pv:
        if c.kind == 'mfma' and (pvd & cvu): need = max(need, 2)
        if c.mn.startswith('v_permlane') and (pvd & cvu): need = max(need, 2)
        if (c.mn.startswith('v_readlane') or c.mn.startswith('v_readfirstlane')) and (pvd & cvu): need = max(need, 1)
        if 'dpp' in c.text and cv and (pvd & cvu): need = max(need, 2)
        if p.kind == 'trans' and cv and c.kind != 'trans' and (pvd & cvu): need = max(need, 1)
        if p.kind == 'trans' and c.kind == 'trans' and (pvd & cvu): need = max(need, 1)
        if psd:
            if c.kind == 'vmem' and (psd & csu): need = max(need, 5)
            if cv and (psd & csu): need = max(need, 2)
            if (c.mn.startswith('v_readlane') or c.mn.startswith('v_writelane')) and (psd & csu): need = max(need, 4)
            if c.kind in ('salu', 'branch', 'smem') and (psd & csu): need = max(need, 1)
            if (126 in psd) and c.kind == 'mfma': need = max(need, 4)
            if (126 in psd) and ('dpp' in c.text): need = max(need, 5)
        if 'sdwa' in p.text and cv and (pvd & (cvu | cvd)): need = max(need, 1)
    if p.kind == 'salu' and 124 in psd and (c.lds_dma or c.mn.startswith('s_movrel')): need = max(need, 1)
    if p.wide_store and (cv or c.kind in ('ds', 'vmem', 'mfma')):
        if V(regs_of(p.ops[0])) & cvd: need = max(need, 2)
    return need

class Emitter:
    def __init__(self):
        self.items = []
        self._lbl = 0
        self.nbar = 0
    def __call__(self, text):
        for line in text.split('\n'):
            line = line.strip()
            if not line: continue
            ins = Ins(line)
            if ins.mn == 's_barrier': self.nbar += 1
            self.items.append(ins)
    def label(self, name): self(name + ':')
    def newlabel(self, base='L'):
        self._lbl += 1
        return f'{base}_{self._lbl}'
    def comment(self, t): self.items.append(Ins('; ' + t))
    def finalize(self, window=20):
        items = self.items
        n = len(items)
        lab = {}
        for i, it in enumerate(items):
            if it.is_label: lab[it.text.split(';')[0].strip()[:-1]] = i
        preds = [[] for _ in range(n)]
        for i, it in enumerate(items):
            if it.kind == 'branch':
                tgt = it.ops[0]
                if tgt in lab: preds[lab[tgt]].append(i)
            if i + 1 < n and not (it.mn == 's_branch' or it.mn == 's_endpgm' or it.mn.startswith('s_setpc')):
                preds[i + 1].append(i)
        pad = [0] * n
        inserted = 0
        for i, c in enumerate(items):
            if c.kind == 'none': continue
            need = 0
            stack = [(p, 0) for p in preds[i]]
            seen = {}
            while stack:
                j, dist = stack.pop()
                if seen.get(j, 1 << 30) <= dist: continue
                seen[j] = dist
                p = items[j]
                if p.kind != 'none':
                    g = required_gap(p, c)
                    if g > dist: need = max(need, g - dist)
                    nd = dist + p.states + pad[j]
                else:
                    nd = dist
                if nd < window:
                    for q in preds[j]: stack.append((q, nd))
            pad[i] = need
            if need: inserted += 1
        out = []
        for i, c in enumerate(items):
            need = pad[i]
            while need > 0:
                k = min(need, 16)
                out.append(Ins(f's_nop {k-1}'))
                need -= k
            out.append(c)
        self.inserted = inserted
        return out
    def text(self):
        lines = []
        for i in self.finalize():
            lines.append(i.text if (i.is_label or i.text.startswith('.')) else '    ' + i.text)
        return '\n'.join(lines) + '\n'
```

```python
import sys, os
sys.path.insert(0, os.path.dirname(os.path.abspath(__file__)))
from emit import Emitter

KNAME = 'interleave_layers__softmax_full_mha__mixer_s_mlp__prompt_kernel'
PROFILE = int(os.environ.get('PROFILE', '0'))
FORCE_SAFE = int(os.environ.get('FORCE_SAFE', '0'))
FORCE_SLOW = int(os.environ.get('FORCE_SLOW', '0'))
NLAYERS = int(os.environ.get('NLAYERS', '2'))

WS_LP   = 0x0000
WS_GP   = 0x1000
WS_CS   = 0x10000
CS_QKV, CS_W1, CS_W3 = 0, 1536 * 4, 2048 * 4
WS_PROF = 0x20000
WS_L0   = 0x100000
WS_LSTRIDE = 0x2000000
MB = 1 << 20
O_QF, O_KF, O_VF, O_OA, O_X2, O_HA, O_X1, O_X3, O_GA = [i * 2 * MB for i in range(9)]
O_ST2 = 24 * MB
O_ST1 = O_ST2 + 0x40000
O_ST3 = O_ST1 + 0x40000
WS_SIZE = 268435456
OOB = 0x10000000

ABLK = 1040
L_A = 0
L_W = 64 * ABLK
NSLOT = 11
L_MISC = L_W + NSLOT * 8192
L_MU2, L_R2, L_R22 = L_MISC, L_MISC + 256, L_MISC + 512
L_MU1, L_R1 = L_MISC + 768, L_MISC + 1024
L_MU3, L_R3 = L_MISC + 1280, L_MISC + 1536
L_CSP = L_MISC + 2048
L_FLAG = L_MISC + 2688
LDS_SIZE = 163840
KV_SLOT = 16384

SRD_WS, SRD_X, SRD_OUT, SRD_DBG, SRD_WQKV, SRD_WO, SRD_W1, SRD_W2, SRD_W3, SRD_W4 = 4, 8, 12, 16, 20, 24, 28, 32, 36, 40
sG, sJ, sRB, sCB, sWAVE, sLAYER, sLB, sRT0, sFAST, sDEAD = 44, 45, 46, 47, 48, 49, 50, 51, 52, 53
sCB128, sCB448 = 54, 55
sT0, sT1, sT2, sT3, sT4, sT5, sT6, sT7 = range(56, 64)
sM64 = 64
sVMASK = 66
sPM_RB = 68
sPM_5L = 70
sPM_5R = 72
sSUB = 74
sNI = 75
sLA_M0 = 76
sLW_M0 = 77
sCNT, sSLOT, sKOFF, sU = 78, 79, 80, 81
sC2 = 82
sONE = 84
sSPIN = 86
sC = 87
sPT = 88
sPIDX = 90
sXRT = 91
sEXEC = 92
sT8, sT9 = 94, 95

def srd(n): return f's[{n}:{n+3}]'
def v(n, w=1): return f'v{n}' if w == 1 else f'v[{n}:{n+w-1}]'
def s(n, w=1): return f's{n}' if w == 1 else f's[{n}:{n+w-1}]'

GELU_C1 = 2.0 * 0.7978845608028654 * 1.4426950408889634
GELU_C2 = GELU_C1 * 0.044715
QSCALE = 0.25 * 1.4426950408889634
import struct
def fbits(x): return '0x%08x' % struct.unpack('<I', struct.pack('<f', x))[0]

class Chunk:
    def __init__(self, srd_, ldw, base_sgpr, lit, half=False):
        self.srd, self.ldw, self.base_sgpr, self.lit, self.half = srd_, ldw, base_sgpr, lit, half
WSTREAM = []
STAGE_W0 = {}
def _mk():
    STAGE_W0['S3'] = len(WSTREAM)
    for kc in range(8): WSTREAM.append(Chunk(SRD_WO, 1024, sCB128, kc * 65536))
    STAGE_W0['S4'] = len(WSTREAM)
    for kc in range(8): WSTREAM.append(Chunk(SRD_W1, 1024, sCB128, kc * 65536))
    STAGE_W0['S5'] = len(WSTREAM)
    for kc in range(8): WSTREAM.append(Chunk(SRD_W2, 1024, sCB128, kc * 65536))
    STAGE_W0['S6'] = len(WSTREAM)
    for p in range(4):
        for kc in range(8): WSTREAM.append(Chunk(SRD_W3, 3584, sCB448, kc * 64 * 3584 + p * 128, half=(p == 3)))
    STAGE_W0['S7'] = len(WSTREAM)
    for kc in range(28): WSTREAM.append(Chunk(SRD_W4, 1024, sCB128, kc * 65536))
    STAGE_W0['S1'] = len(WSTREAM)
    for p in range(3):
        for kc in range(8): WSTREAM.append(Chunk(SRD_WQKV, 3072, sCB128, kc * 64 * 3072 + p * 1024))
_mk()
assert len(WSTREAM) == 24 + 32 + 28 + 24
def wslot(i): return L_W + (i % NSLOT) * 8192

e = Emitter()

def prof(tag):
    if not PROFILE: return
    idx = prof.n; prof.n += 1; prof.tags.append(tag)
    l = e.newlabel('Lprof')
    e(f's_cmp_lg_u32 {s(sWAVE)}, 4')
    e(f's_cbranch_scc1 {l}')
    e(f's_memtime {s(sPT,2)}')
    e('s_waitcnt lgkmcnt(0)')
    e(f's_lshl_b32 {s(sT8)}, s2, 8')
    e(f's_lshl_b32 {s(sT9)}, {s(sLAYER)}, 7')
    e(f's_add_u32 {s(sT8)}, {s(sT8)}, {s(sT9)}')
    e(f's_add_u32 {s(sT8)}, {s(sT8)}, {WS_PROF + idx * 4}')
    e(f'v_mov_b32 v250, {s(sPT)}')
    e(f'v_mov_b32 v251, 0')
    e(f's_mov_b64 {s(sEXEC,2)}, exec')
    e('s_mov_b64 exec, 1')
    e(f'buffer_store_dword v250, v251, {srd(SRD_WS)}, {s(sT8)} offen')
    e(f's_mov_b64 exec, {s(sEXEC,2)}')
    e.label(l)
prof.n = 0; prof.tags = []

cA_RD, cW_RD0, cW_RD1, cWH_RD0, cWH_RD1, cL16, cROWM, cSTAT, cCS_T, cCS_D, cLST_T, cLST_D, cVF = range(2, 15)
cTMP = 15
cACC = [16, 32]
cWF = [48, 64]
cCS = 80
cT = 96
cU = 112
cC1 = 124
cMU, cR = 126, 127
cAF = 128
lW1024, lW3072, lW3584 = 2, 4, 6
lWH, lA32, lA112 = 8, 9, 10
lASH = 11
lST, lP_LP, lP_S2, lP_5R, lSTW = 15, 16, 17, 18, 19
lT = 20

def publish(array_ws, count_imm, always_sc1):
    e(f's_add_u32 {s(sT0)}, {s(sC)}, {count_imm}')
    e(f'v_mov_b32 v{lT}, {s(sT0)}')
    e(f's_lshl_b32 {s(sT1)}, {s(sG)}, 8')
    e(f's_lshl_b32 {s(sT2)}, {s(sJ)}, 2')
    e(f's_add_u32 {s(sT1)}, {s(sT1)}, {s(sT2)}')
    e(f's_add_u32 {s(sT1)}, {s(sT1)}, {array_ws}')
    e(f'v_mov_b32 v{lT+1}, 0')
    e(f's_mov_b64 {s(sEXEC,2)}, exec')
    e('s_mov_b64 exec, 1')
    if always_sc1:
        e(f'buffer_store_dword v{lT}, v{lT+1}, {srd(SRD_WS)}, {s(sT1)} offen sc1')
    else:
        a = e.newlabel('Lpub_safe'); b = e.newlabel('Lpub_done')
        e(f's_cmp_eq_u32 {s(sFAST)}, 0')
        e(f's_cbranch_scc1 {a}')
        e(f'buffer_store_dword v{lT}, v{lT+1}, {srd(SRD_WS)}, {s(sT1)} offen')
        e(f's_branch {b}')
        e.label(a)
        e(f'buffer_store_dword v{lT}, v{lT+1}, {srd(SRD_WS)}, {s(sT1)} offen sc1')
        e.label(b)
    e(f's_mov_b64 exec, {s(sEXEC,2)}')

def poll(addr_v, mask_s, count_imm):
    top = e.newlabel('Lpoll'); done = e.newlabel('Lpoll_done')
    e(f's_add_u32 {s(sT0)}, {s(sC)}, {count_imm}')
    e(f's_cmp_lg_u32 {s(sDEAD)}, 0')
    e(f's_cbranch_scc1 {done}')
    e(f's_mov_b32 {s(sSPIN)}, 0x40000')
    e.label(top)
    e(f'buffer_load_dword v{lT+2}, v{addr_v}, {srd(SRD_WS)}, 0 offen sc1')
    e('s_waitcnt vmcnt(0)')
    e(f'v_cmp_le_u32 vcc, {s(sT0)}, v{lT+2}')
    e(f's_and_b64 vcc, vcc, {mask_s}')
    e(f's_cmp_eq_u64 vcc, {mask_s}')
    e(f's_cbranch_scc1 {done}')
    e(f's_sub_u32 {s(sSPIN)}, {s(sSPIN)}, 1')
    e(f's_cmp_lg_u32 {s(sSPIN)}, 0')
    e(f's_cbranch_scc1 {top}')
    e(f's_mov_b32 {s(sDEAD)}, 1')
    e.label(done)

def only_wave4(fn):
    l = e.newlabel('Lnot4')
    e(f's_cmp_lg_u32 {s(sWAVE)}, 4')
    e(f's_cbranch_scc1 {l}')
    fn()
    e.label(l)

class VM:
    def __init__(self): self.ops = []
    def add(self, tag, n=1): self.ops += [tag] * n
    def n_after(self, tag):
        idx = max(i for i, t in enumerate(self.ops) if t == tag)
        return len(self.ops) - 1 - idx
    def wait(self, *tags):
        n = min(self.n_after(t) for t in tags if t in self.ops)
        e(f's_waitcnt vmcnt({min(n, 63)})')

def l_issue_w(vm, i):
    c = WSTREAM[i]
    e(f's_add_u32 {s(sT0)}, {s(c.base_sgpr)}, {c.lit}')
    if c.half:
        e(f's_mul_i32 {s(sT1)}, {s(sSUB)}, 1024')
        e(f's_add_u32 m0, {s(sT1)}, {wslot(i)}')
        e(f'buffer_load_dwordx4 v{lWH}, {srd(c.srd)}, {s(sT0)} offen lds')
        vm.add(('W', i), 1)
    else:
        vr = {1024: lW1024, 3072: lW3072, 3584: lW3584}[c.ldw]
        e(f's_add_u32 m0, {s(sLW_M0)}, {wslot(i) - L_W}')
        e(f'buffer_load_dwordx4 v{vr}, {srd(c.srd)}, {s(sT0)} offen lds')
        e(f's_add_u32 m0, {s(sLW_M0)}, {wslot(i) - L_W + 1024}')
        e(f'buffer_load_dwordx4 v{vr+1}, {srd(c.srd)}, {s(sT0)} offen lds')
        vm.add(('W', i), 2)

def l_issue_a(vm, kc, voff, base_s, tag):
    e(f's_add_u32 {s(sT0)}, {s(base_s)}, {kc * 4096}')
    e(f's_add_u32 m0, {s(sLA_M0)}, {(4 * kc % 32) * ABLK}')
    e(f'buffer_load_dwordx4 v{voff}, {srd(SRD_WS)}, {s(sT0)} offen sc1 lds')
    e(f's_add_u32 m0, {s(sLA_M0)}, {(4 * kc % 32) * ABLK + ABLK - 1024}')
    e(f'buffer_load_dwordx4 v{voff}, {srd(SRD_WS)}, {s(sT0)} offen offset:1024 sc1 lds')
    vm.add((tag, kc), 2)

def l_stats_load(vm, st_off, prev=False):
    e(f's_lshl_b32 {s(sT0)}, {s(sRT0)}, 12')
    e(f's_add_u32 {s(sT0)}, {s(sT0)}, {s(sLB)}')
    e(f's_add_u32 {s(sT0)}, {s(sT0)}, {st_off}')
    if prev: e(f's_sub_u32 {s(sT0)}, {s(sT0)}, {WS_LSTRIDE}')
    for i in range(4):
        e(f'buffer_load_dwordx2 {v(lT+4+2*i, 2)}, v{lST}, {srd(SRD_WS)}, {s(sT0)} offen offset:{i*256} sc1')
    vm.add('ST', 4)

def l_stats_process(vm, l_mu, l_r, l_r2=None):
    vm.wait('ST')
    a = lT + 4
    e(f'v_add_f32 v{a}, v{a}, v{a+2}'); e(f'v_add_f32 v{a+1}, v{a+1}, v{a+3}')
    e(f'v_add_f32 v{a+4}, v{a+4}, v{a+6}'); e(f'v_add_f32 v{a+5}, v{a+5}, v{a+7}')
    e(f'v_add_f32 v{a}, v{a}, v{a+4}'); e(f'v_add_f32 v{a+1}, v{a+1}, v{a+5}')
    for swap in ('v_permlane16_swap_b32', 'v_permlane32_swap_b32'):
        e(f'v_mov_b32 v{a+2}, v{a}'); e(f'v_mov_b32 v{a+3}, v{a+1}')
        e(f'{swap} v{a}, v{a+2}'); e(f'{swap} v{a+1}, v{a+3}')
        e(f'v_add_f32 v{a}, v{a}, v{a+2}'); e(f'v_add_f32 v{a+1}, v{a+1}, v{a+3}')
    e(f'v_mul_f32 v{a}, {fbits(1/512)}, v{a}')
    e(f'v_mul_f32 v{a+1}, {fbits(1/512)}, v{a+1}')
    e(f'v_fma_f32 v{a+1}, -v{a}, v{a}, v{a+1}')
    e(f'v_max_f32 v{a+1}, 0, v{a+1}')
    e(f'v_add_f32 v{a+2}, {fbits(1e-5)}, v{a+1}')
    e(f'v_rsq_f32 v{a+2}, v{a+2}')
    e(f'v_sub_f32 v{a+4}, 0, v{a}')
    e(f'ds_write_b32 v{lSTW}, v{a+4} offset:{l_mu - L_MISC}')
    e(f'ds_write_b32 v{lSTW}, v{a+2} offset:{l_r - L_MISC}')
    if l_r2 is not None:
        e(f'v_mul_f32 v{a+3}, v{a+2}, v{a+2}')
        e(f'v_mul_f32 v{a+3}, v{a+3}, v{a+1}')
        e(f'v_add_f32 v{a+3}, {fbits(1e-5)}, v{a+3}')
        e(f'v_rsq_f32 v{a+3}, v{a+3}')
        e(f'v_mul_f32 v{a+3}, v{a+3}, v{a+2}')
        e(f'ds_write_b32 v{lSTW}, v{a+3} offset:{l_r2 - L_MISC}')
    e('s_waitcnt lgkmcnt(0)')

def loader_stage(name, nsteps, a_kind, stats=None):
    w0 = STAGE_W0[name]
    vm = VM()
    for i in range(w0, w0 + NSLOT): vm.add(('W', i), 1 if WSTREAM[i].half else 2)
    vm0 = VM(); vm0.ops = list(vm.ops)
    s1 = (name == 'S1')
    if s1:
        lskip = e.newlabel('LskipA'); e(f's_cmp_eq_u32 {s(sLAYER)}, 0'); e(f's_cbranch_scc1 {lskip}')
    if stats: l_stats_load(vm, stats[0], prev=s1)
    o_buf, KS = a_kind[1], a_kind[2]
    if a_kind[0] == 'af': e(f's_mul_i32 {s(sXRT)}, {s(sRT0)}, {KS * 1024}')
    else: e(f's_mov_b32 {s(sXRT)}, 0')
    e(f's_add_u32 {s(sXRT)}, {s(sXRT)}, {s(sLB)}')
    e(f's_add_u32 {s(sXRT)}, {s(sXRT)}, {o_buf}')
    if s1: e(f's_sub_u32 {s(sXRT)}, {s(sXRT)}, {WS_LSTRIDE}')
    nA = KS // 4
    def voff(kc): return a_kind[3] if a_kind[0] == 'af' else lASH + kc // 2
    for kc in range(min(8, nA)): l_issue_a(vm, kc, voff(kc), sXRT, name + 'A')
    if s1: e.label(lskip)
    for t in range(nsteps):
        need = [('W', w0 + t)]
        if t < nA: need.append((name + 'A', t))
        n = min(vm.n_after(x) for x in need)
        if s1: n = min(n, vm0.n_after(('W', w0 + t)))
        e(f's_waitcnt vmcnt({min(n, 63)})')
        e('s_barrier')
        if stats and t == 1:
            if s1:
                l = e.newlabel('LskipS'); e(f's_cmp_eq_u32 {s(sLAYER)}, 0'); e(f's_cbranch_scc1 {l}')
            l_stats_process(vm, stats[1], stats[2], stats[3] if len(stats) > 3 else None)
            if s1: e.label(l)
        if t >= 1:
            nx = w0 + t - 1 + NSLOT
            if nx < len(WSTREAM):
                l_issue_w(vm, nx); vm0.add(('W', nx), 1 if WSTREAM[nx].half else 2)
            if nA > 8 and t - 1 + 8 < nA: l_issue_a(vm, t - 1 + 8, voff(t - 1 + 8), sXRT, name + 'A')
        if s1 and t == 2: colsum_finish(vm)
    if s1: e('s_waitcnt vmcnt(0)')
    e('s_barrier')
    nx = w0 + nsteps - 1 + NSLOT
    if nx < len(WSTREAM): l_issue_w(vm, nx)

def colsum_finish(vm):
    l = e.newlabel('Lcs_skip')
    e(f's_cmp_lg_u32 {s(sLAYER)}, 0'); e(f's_cbranch_scc1 {l}')
    e(f's_cmp_lg_u32 {s(sWAVE)}, 7'); e(f's_cbranch_scc1 {l}')
    e(f's_cmp_ge_u32 s2, 240'); e(f's_cbranch_scc1 {l}')
    a = lT + 16
    e(f'v_and_b32 v{a}, 15, v1'); e(f'v_lshlrev_b32 v{a}, 2, v{a}')
    e(f'v_add_u32 v{a+1}, {L_CSP}, v{a}')
    for i in range(8): e(f'ds_read_b32 v{a+2+i}, v{a+1} offset:{i*64}')
    e('s_waitcnt lgkmcnt(0)')
    for i in range(1, 8): e(f'v_add_f32 v{a+2}, v{a+2}, v{a+2+i}')
    e(f's_lshl_b32 {s(sT0)}, s2, 6'); e(f's_add_u32 {s(sT0)}, {s(sT0)}, {WS_CS}')
    e(f's_mov_b64 {s(sEXEC,2)}, exec'); e('s_mov_b64 exec, 0xffff')
    e(f'buffer_store_dword v{a+2}, v{a}, {srd(SRD_WS)}, {s(sT0)} offen sc1')
    e(f's_mov_b64 exec, {s(sEXEC,2)}')
    e.label(l)

def c_reads(t_global, kc, wbuf, with_a, half, a_ring):
    out = []
    slot = wslot(t_global) - L_W
    for ks in range(4):
        for a in range(2):
            if half:
                off = slot + (16 * ks + 8 * a) * 64; r0, r1 = cWH_RD0, cWH_RD1
            else:
                off = slot + (16 * ks + 8 * a) * 128; r0, r1 = cW_RD0, cW_RD1
            reg = r0
            if off >= 65536: off -= 65536; reg = r1
            out.append(f'ds_read_b64_tr_b16 {v(cWF[wbuf] + 4*ks + 2*a, 2)}, v{reg} offset:{off}')
        if with_a:
            sg = 4 * kc + ks
            dst = cAF + 4 * (sg % 32 if not a_ring else (ks + 4 * (kc % 2)))
            out.append(f'ds_read_b128 {v(dst, 4)}, v{cA_RD} offset:{(sg % 32) * ABLK}')
    return out

def c_mfmas(kc, wbuf, acc, first_zero, a_ring, swap=False):
    out = []
    for ks in range(4):
        sg = 4 * kc + ks
        af = cAF + 4 * (sg % 32 if not a_ring else (ks + 4 * (kc % 2)))
        wf = cWF[wbuf] + 4 * ks
        c = '0' if (first_zero and ks == 0) else v(acc, 16)
        if swap: out.append(f'v_mfma_f32_32x32x16_bf16 {v(acc,16)}, {v(af,4)}, {v(wf,4)}, {c}')
        else:    out.append(f'v_mfma_f32_32x32x16_bf16 {v(acc,16)}, {v(wf,4)}, {v(af,4)}, {c}')
    return out

def interleave(reads, mfmas, fill, per):
    nm = len(mfmas)
    ri = 0
    per_r = (len(reads) + max(nm, 1) - 1) // max(nm, 1)
    if nm == 0:
        for r in reads: e(r)
        for _ in range(per * 4):
            if fill: e(fill.pop(0))
        return
    for m in mfmas:
        e(m)
        for _ in range(per_r):
            if ri < len(reads): e(reads[ri]); ri += 1
        for _ in range(per):
            if fill: e(fill.pop(0))
    while ri < len(reads): e(reads[ri]); ri += 1

def compute_stage(name, panels, pre=None, mid=None):
    w0 = STAGE_W0[name]
    a_ring = (name == 'S7')
    nk = 28 if a_ring else 8
    if pre: pre()
    t = 0
    pend = None
    fill = []
    skip_lbl = None
    for pi, p in enumerate(panels):
        acc = cACC[pi % 2]
        for kc in range(nk):
            e('s_barrier')
            if mid: mid(pi, kc, fill)
            if kc == 0 and p.get('start'): p['start'](acc, fill)
            idle = p.get('half', False)
            reads = c_reads(w0 + t, kc, t % 2, pi == 0, p.get('half', False), a_ring)
            mf = c_mfmas(*pend) if pend else []
            nxt = (kc, t % 2, acc, kc == 0 and p.get('init') is None, a_ring, p.get('swap', False))
            if idle:
                la = e.newlabel('Lhalf_idle'); lb = e.newlabel('Lhalf_join')
                f2 = list(fill)
                e(f's_cmp_eq_u32 {s(sNI)}, 1'); e(f's_cbranch_scc1 {la}')
                interleave(reads, mf, fill, p.get('per', 4))
                e(f's_branch {lb}')
                e.label(la)
                used = len(f2) - len(fill)
                if kc == 0:
                    for m in mf: e(m)
                for x in f2[:used]: e(x)
                e.label(lb)
            else:
                interleave(reads, mf, fill, p.get('per', 4))
            e('s_waitcnt lgkmcnt(0)')
            pend = nxt
            t += 1
            if kc == 0 and pi > 0:
                fill += panels[pi - 1]['epi'](cACC[(pi - 1) % 2])
    last = panels[-1]
    if last.get('half'):
        la = e.newlabel('Lhalf_idle'); lb = e.newlabel('Lhalf_join')
        e(f's_cmp_eq_u32 {s(sNI)}, 1'); e(f's_cbranch_scc1 {la}')
        for m in c_mfmas(*pend): e(m)
        for x in list(fill): e(x)
        for x in last['epi'](cACC[(len(panels) - 1) % 2]): e(x)
        e(f's_branch {lb}')
        e.label(la)
        for x in fill: e(x)
        e.label(lb)
    else:
        for m in c_mfmas(*pend): e(m)
        for x in fill: e(x)
        for x in last['epi'](cACC[(len(panels) - 1) % 2]): e(x)
    e('s_waitcnt vmcnt(0)')
    e('s_barrier')

def pk(op, d, a, b, c=None, mods=''):
    if c is None: return f'{op} {v(d,2)}, {a}, {b} {mods}'.strip()
    return f'{op} {v(d,2)}, {a}, {b}, {c} {mods}'.strip()

def epi_ln(acc, dst, pair=None):
    pair = cMU if pair is None else pair
    o = []
    for i in range(0, 16, 2):
        o.append(f'v_pk_fma_f32 {v(dst+i,2)}, {v(cCS+i,2)}, {v(pair,2)}, {v(acc+i,2)} op_sel_hi:[1,0,1]')
    for i in range(0, 16, 2):
        o.append(f'v_pk_mul_f32 {v(dst+i,2)}, {v(dst+i,2)}, {v(pair,2)} op_sel:[0,1] op_sel_hi:[1,1]')
    return o

def epi_gelu(y, out):
    o = []
    for i in range(8):
        Y = y + 2 * i; U = cU + 4 * (i % 2); E = U + 2
        seq = [
            f'v_pk_mul_f32 {v(U,2)}, {v(Y,2)}, {v(Y,2)}',
            f'v_pk_fma_f32 {v(U,2)}, {v(U,2)}, {s(sC2,2)}, {v(cC1,2)}',
            f'v_pk_mul_f32 {v(U,2)}, {v(U,2)}, {v(Y,2)}',
            f'v_exp_f32 v{E}, -v{U}',
            f'v_exp_f32 v{E+1}, -v{U+1}',
            f'v_pk_add_f32 {v(E,2)}, {v(E,2)}, {s(sONE,2)}',
            f'v_rcp_f32 v{E}, v{E}',
            f'v_rcp_f32 v{E+1}, v{E+1}',
            f'v_pk_mul_f32 {v(Y,2)}, {v(Y,2)}, {v(E,2)}',
            f'v_cvt_pk_bf16_f32 v{out+i}, v{Y}, v{Y+1}',
        ]
        o.append(seq)
    res = []
    for i in range(0, 8, 2):
        a, b = o[i], o[i+1]
        for x, y_ in zip(a, b): res += [x, y_]
    return res

def epi_pack(src, out):
    return [f'v_cvt_pk_bf16_f32 v{out+i}, v{src+2*i}, v{src+2*i+1}' for i in range(8)]

def epi_store_af(out, soff_s, flags='sc1'):
    return [f'buffer_store_dwordx4 {v(out,4)}, v{cL16}, {srd(SRD_WS)}, {s(soff_s)} offen {flags}',
            f'buffer_store_dwordx4 {v(out+4,4)}, v{cL16}, {srd(SRD_WS)}, {s(soff_s)} offen offset:1024 {flags}']

def epi_stats(src, st_off):
    P, Q = cU, cU + 2
    o = [f'v_pk_add_f32 {v(P,2)}, {v(src,2)}, {v(src+2,2)}',
         f'v_pk_mul_f32 {v(Q,2)}, {v(src,2)}, {v(src,2)}']
    for i in range(2, 16, 2):
        if i > 2: o.append(f'v_pk_add_f32 {v(P,2)}, {v(P,2)}, {v(src+i,2)}')
        o.append(f'v_pk_fma_f32 {v(Q,2)}, {v(src+i,2)}, {v(src+i,2)}, {v(Q,2)}')
    o += [f'v_add_f32 v{P}, v{P}, v{P+1}', f'v_add_f32 v{P+1}, v{Q}, v{Q+1}',
          f'v_mov_b32 v{Q}, v{P}', f'v_mov_b32 v{Q+1}, v{P+1}',
          f'v_permlane32_swap_b32 v{P}, v{Q}', f'v_permlane32_swap_b32 v{P+1}, v{Q+1}',
          f'v_add_f32 v{P}, v{P}, v{Q}', f'v_add_f32 v{P+1}, v{P+1}, v{Q+1}',
          f's_add_u32 {s(sT0)}, {s(sRT0)}, {s(sSUB)}',
          f's_lshl_b32 {s(sT0)}, {s(sT0)}, 4',
          f's_lshl_b32 {s(sT1)}, {s(sCB)}, 1',
          f's_add_u32 {s(sT0)}, {s(sT0)}, {s(sT1)}',
          f's_add_u32 {s(sT0)}, {s(sT0)}, {s(sNI)}',
          f's_lshl_b32 {s(sT0)}, {s(sT0)}, 8',
          f's_add_u32 {s(sT0)}, {s(sT0)}, {s(sLB)}',
          f's_add_u32 {s(sT0)}, {s(sT0)}, {st_off}',
          f'buffer_store_dwordx2 {v(P,2)}, v{cSTAT}, {srd(SRD_WS)}, {s(sT0)} offen sc1']
    return o

def af_tile_soff(dst_s, o_buf, KS, s_expr_extra=0, lb=sLB):
    e(f's_add_u32 {s(dst_s)}, {s(sRT0)}, {s(sSUB)}')
    e(f's_mul_i32 {s(dst_s)}, {s(dst_s)}, {KS}')
    e(f's_lshl_b32 {s(sT7)}, {s(sCB)}, 2')
    e(f's_add_u32 {s(dst_s)}, {s(dst_s)}, {s(sT7)}')
    e(f's_lshl_b32 {s(sT7)}, {s(sNI)}, 1')
    e(f's_add_u32 {s(dst_s)}, {s(dst_s)}, {s(sT7)}')
    e(f's_lshl_b32 {s(dst_s)}, {s(dst_s)}, 10')
    e(f's_add_u32 {s(dst_s)}, {s(dst_s)}, {s(lb)}')
    e(f's_add_u32 {s(dst_s)}, {s(dst_s)}, {o_buf}')

def unpack8(src, dst):
    o = []
    for i in range(8):
        o.append(f'v_lshlrev_b32 v{dst+2*i}, 16, v{src+i}')
        o.append(f'v_and_b32 v{dst+2*i+1}, 0xffff0000, v{src+i}')
    return o

def load_tile_af(dst, soff_s):
    e(f'buffer_load_dwordx4 {v(dst,4)}, v{cL16}, {srd(SRD_WS)}, {s(soff_s)} offen sc1')
    e(f'buffer_load_dwordx4 {v(dst+4,4)}, v{cL16}, {srd(SRD_WS)}, {s(soff_s)} offen offset:1024 sc1')

def set_gelu_consts():
    e(f'v_mov_b32 v{cC1}, {fbits(GELU_C1)}'); e(f'v_mov_b32 v{cC1+1}, {fbits(GELU_C1)}')

def read_stats_T(l_mu, l_r):
    return [f'ds_read_b32 v{cMU}, v{cLST_T} offset:{l_mu - L_MISC}',
            f'ds_read_b32 v{cR}, v{cLST_T} offset:{l_r - L_MISC}']

def cs_load_T(col_s, base, extra=0, zero_l0=False):
    o = [f's_lshl_b32 {s(sT6)}, {s(col_s)}, 2', f's_add_u32 {s(sT6)}, {s(sT6)}, {WS_CS + base + 4 * extra}']
    if zero_l0:
        o += [f's_cmp_eq_u32 {s(sLAYER)}, 0\ns_cselect_b32 {s(sT6)}, {OOB}, {s(sT6)}']
    for g in range(4):
        o.append(f'buffer_load_dwordx4 {v(cCS+4*g,4)}, v{cCS_T}, {srd(SRD_WS)}, {s(sT6)} offen offset:{g*32} sc1')
    return o

def prologue():
    e('s_cmp_ge_u32 s2, 256'); e('s_cbranch_scc1 L_END')
    e('s_load_dwordx8 s[56:63], s[0:1], 0')
    e('s_load_dwordx8 s[64:71], s[0:1], 32')
    e('s_load_dwordx4 s[72:75], s[0:1], 64')
    e('s_load_dwordx2 s[76:77], s[0:1], 80')
    e('v_and_b32 v1, 63, v0'); e('v_lshrrev_b32 v2, 6, v0')
    e(f's_and_b32 {s(sG)}, s2, 7'); e(f's_lshr_b32 {s(sJ)}, s2, 3')
    e(f'v_readfirstlane_b32 {s(sWAVE)}, v2')
    e(f's_lshr_b32 {s(sRB)}, {s(sJ)}, 3'); e(f's_and_b32 {s(sCB)}, {s(sJ)}, 7')
    e(f's_lshl_b32 {s(sRT0)}, {s(sG)}, 3'); e(f's_lshl_b32 s3, {s(sRB)}, 1'); e(f's_add_u32 {s(sRT0)}, {s(sRT0)}, s3')
    e('s_waitcnt lgkmcnt(0)')
    for sr, src, size in ((SRD_X, 56, 2097152), (SRD_WQKV, 58, 1572864), (SRD_WO, 60, 524288), (SRD_W1, 64, 524288),
                          (SRD_W2, 66, 524288), (SRD_W3, 68, 1835008), (SRD_W4, 70, 1835008), (SRD_OUT, 72, 2097152),
                          (SRD_DBG, 74, 256), (SRD_WS, 76, WS_SIZE)):
        e(f's_mov_b32 s{sr}, s{src}'); e(f's_mov_b32 s{sr+1}, s{src+1}')
        e(f's_mov_b32 s{sr+2}, {size}'); e(f's_mov_b32 s{sr+3}, 0x00020000')
    e(f's_lshl_b32 {s(sCB128)}, {s(sCB)}, 7'); e(f's_mul_i32 {s(sCB448)}, {s(sCB)}, 448')
    e(f's_mov_b32 {s(sLAYER)}, 0'); e(f's_mov_b32 {s(sC)}, 0'); e(f's_mov_b32 {s(sLB)}, {WS_L0}')
    e(f's_mov_b32 {s(sFAST)}, 0'); e(f's_mov_b32 {s(sDEAD)}, 0')
    e(f's_mov_b32 {s(sVMASK)}, 0x0000ffff'); e(f's_mov_b32 {s(sVMASK+1)}, 0x0000ffff')
    e(f's_mov_b32 {s(sC2)}, {fbits(GELU_C2)}'); e(f's_mov_b32 {s(sC2+1)}, {fbits(GELU_C2)}')
    e(f's_mov_b32 {s(sONE)}, 1.0'); e(f's_mov_b32 {s(sONE+1)}, 1.0')
    e('s_mov_b32 s96, -1'); e('s_mov_b32 s97, 0')
    prof('start')
    e('v_lshrrev_b32 v20, 3, v1'); e(f's_lshl_b32 s3, {s(sWAVE)}, 3'); e('v_add_u32 v20, s3, v20')
    e('v_and_b32 v21, 7, v1')
    e('v_lshlrev_b32 v22, 10, v20'); e('v_lshlrev_b32 v23, 4, v21'); e('v_add_u32 v22, v22, v23')
    e(f's_lshl_b32 {s(sT0)}, {s(sRT0)}, 15')
    for i in range(8):
        e(f'buffer_load_dwordx4 {v(32+4*i,4)}, v22, {srd(SRD_X)}, {s(sT0)} offen offset:{i*128}')
    e('s_cmp_lt_u32 s2, 96')
    e(f's_cselect_b32 s56, s{SRD_WQKV}, s{SRD_W1}'); e(f's_cselect_b32 s57, s{SRD_WQKV+1}, s{SRD_W1+1}')
    e('s_mov_b32 s58, 524288'); e('s_mov_b32 s60, 1024')
    e('s_cmp_lt_u32 s2, 96')
    e(f's_cselect_b32 s58, 1572864, s58'); e(f's_cselect_b32 s60, 3072, s60'); e(f's_cselect_b32 s61, 0, 96')
    e('s_cmp_lt_u32 s2, 128')
    e(f's_cselect_b32 s56, s56, s{SRD_W3}'); e(f's_cselect_b32 s57, s57, s{SRD_W3+1}')
    e(f's_cselect_b32 s58, s58, 1835008'); e(f's_cselect_b32 s60, s60, 3584'); e(f's_cselect_b32 s61, s61, 128')
    e('s_cmp_lt_u32 s2, 240'); e('s_cselect_b32 s58, s58, 0')
    e('s_mov_b32 s59, 0x00020000')
    e('s_sub_u32 s61, s2, s61'); e('s_lshl_b32 s61, s61, 5')
    e('v_and_b32 v24, 31, v1'); e(f's_lshl_b32 s3, {s(sWAVE)}, 6'); e('v_add_u32 v24, s3, v24')
    e('v_mul_lo_u32 v24, v24, s60'); e('v_lshrrev_b32 v25, 5, v1'); e('v_lshlrev_b32 v25, 4, v25'); e('v_add_u32 v24, v24, v25')
    e('s_lshl_b32 s62, s60, 5'); e('s_add_u32 s62, s62, s61')
    e('buffer_load_dwordx4 v[200:203], v24, s[56:59], s61 offen')
    e('buffer_load_dwordx4 v[204:207], v24, s[56:59], s62 offen')
    l = e.newlabel('Lnz'); e(f's_cmp_lg_u32 {s(sWAVE)}, 1'); e(f's_cbranch_scc1 {l}')
    e(f's_lshl_b32 {s(sT1)}, {s(sG)}, 8'); e(f's_lshl_b32 {s(sT2)}, {s(sJ)}, 2'); e(f's_add_u32 {s(sT1)}, {s(sT1)}, {s(sT2)}')
    e('v_mov_b32 v26, 0'); e(f's_mov_b64 {s(sEXEC,2)}, exec'); e('s_mov_b64 exec, 1')
    e(f'buffer_store_dword v26, v26, {srd(SRD_WS)}, {s(sT1)} offen offset:{WS_LP} sc1') if WS_LP < 4096 else None
    e(f's_add_u32 {s(sT1)}, {s(sT1)}, {WS_GP}')
    e(f'buffer_store_dword v26, v26, {srd(SRD_WS)}, {s(sT1)} offen sc1')
    e(f's_mov_b64 exec, {s(sEXEC,2)}')
    e.label(l)
    e(f's_cmp_ge_u32 {s(sWAVE)}, 4'); e('s_cbranch_scc1 L_PRO_LOADER')
    setup_compute()
    e('s_waitcnt vmcnt(0)')
    l = e.newlabel('Lna'); e(f's_cmp_lg_u32 {s(sWAVE)}, 1'); e(f's_cbranch_scc1 {l}')
    e(f's_getreg_b32 {s(sT0)}, hwreg(HW_REG_XCC_ID, 0, 4)')
    e(f's_and_b32 {s(sT0)}, {s(sT0)}, 7'); e(f's_lshl_b32 {s(sT0)}, {s(sT0)}, 3')
    e(f's_lshl_b64 {s(sT2,2)}, 1, {s(sT0)}')
    e(f'v_mov_b32 v26, {s(sT2)}'); e(f'v_mov_b32 v27, {s(sT3)}')
    e(f's_lshl_b32 {s(sT1)}, {s(sG)}, 3'); e(f'v_mov_b32 v28, {s(sT1)}')
    e(f's_mov_b64 {s(sEXEC,2)}, exec'); e('s_mov_b64 exec, 1')
    e(f'buffer_atomic_add_x2 v[26:27], v28, {srd(SRD_DBG)}, 0 offen sc1')
    e(f's_mov_b64 exec, {s(sEXEC,2)}')
    e.label(l)
    e('s_branch L_PRO_COMMON')
    e.label('L_PRO_LOADER')
    setup_loader()
    vm = VM()
    for i in range(STAGE_W0['S1'], STAGE_W0['S1'] + NSLOT): l_issue_w(vm, i)
    e('s_waitcnt vmcnt(22)')
    e.label('L_PRO_COMMON')
    F = 64
    for i in range(8):
        for d in range(4):
            e(f'v_lshlrev_b32 v{F+8*i+2*d}, 16, v{32+4*i+d}')
            e(f'v_and_b32 v{F+8*i+2*d+1}, 0xffff0000, v{32+4*i+d}')
    P, Q = 128, 130
    e(f'v_pk_add_f32 {v(P,2)}, {v(F,2)}, {v(F+2,2)}'); e(f'v_pk_mul_f32 {v(Q,2)}, {v(F,2)}, {v(F,2)}')
    for k in range(2, 64, 2):
        if k > 2: e(f'v_pk_add_f32 {v(P,2)}, {v(P,2)}, {v(F+k,2)}')
        e(f'v_pk_fma_f32 {v(Q,2)}, {v(F+k,2)}, {v(F+k,2)}, {v(Q,2)}')
    e(f'v_add_f32 v{P}, v{P}, v{P+1}'); e(f'v_add_f32 v{Q}, v{Q}, v{Q+1}')
    for ctl in ('quad_perm:[1,0,3,2]', 'quad_perm:[2,3,0,1]', 'row_half_mirror'):
        e(f'v_add_f32_dpp v{P+1}, v{P}, v{P} {ctl} row_mask:0xf bank_mask:0xf')
        e(f'v_add_f32_dpp v{Q+1}, v{Q}, v{Q} {ctl} row_mask:0xf bank_mask:0xf')
        e(f'v_mov_b32 v{P}, v{P+1}'); e(f'v_mov_b32 v{Q}, v{Q+1}')
    e(f'v_mul_f32 v{P}, {fbits(1/512)}, v{P}'); e(f'v_mul_f32 v{Q}, {fbits(1/512)}, v{Q}')
    e(f'v_fma_f32 v{Q}, -v{P}, v{P}, v{Q}'); e(f'v_max_f32 v{Q}, 0, v{Q}')
    e(f'v_add_f32 v{Q}, {fbits(1e-5)}, v{Q}'); e(f'v_rsq_f32 v{Q}, v{Q}')
    e(f'v_mul_f32 v{Q+1}, v{P}, v{Q}'); e(f'v_sub_f32 v{Q+1}, 0, v{Q+1}')
    for k in range(0, 64, 2):
        e(f'v_pk_fma_f32 {v(F+k,2)}, {v(F+k,2)}, {v(Q,2)}, {v(Q,2)} op_sel:[0,0,1] op_sel_hi:[1,0,1]')
    for i in range(8):
        for d in range(4):
            e(f'v_cvt_pk_bf16_f32 v{32+4*i+d}, v{F+8*i+2*d}, v{F+8*i+2*d+1}')
    e('v_lshrrev_b32 v22, 5, v20'); e(f'v_mul_u32_u24 v22, {32*ABLK}, v22')
    e('v_lshrrev_b32 v23, 1, v21'); e(f'v_mul_u32_u24 v23, {ABLK}, v23'); e('v_add_u32 v22, v22, v23')
    e('v_and_b32 v23, 31, v20'); e('v_lshlrev_b32 v23, 4, v23'); e('v_add_u32 v22, v22, v23')
    e('v_and_b32 v23, 1, v21'); e('v_lshlrev_b32 v23, 3, v23'); e('v_add_u32 v22, v22, v23')
    for i in range(8):
        e(f'ds_write_b64 v22, {v(32+4*i,2)} offset:{L_A + 4*i*ABLK}')
        e(f'ds_write_b64 v22, {v(32+4*i+2,2)} offset:{L_A + 4*i*ABLK + 512}')
    e('v_and_b32 v24, 31, v1'); e('v_lshrrev_b32 v25, 5, v1'); e('v_lshlrev_b32 v25, 3, v25'); e('v_sub_u32 v24, v24, v25')
    e('v_and_b32 v25, 1, v24'); e('v_lshlrev_b32 v25, 4, v25'); e('v_mov_b32 v26, 0x3f80'); e('v_lshlrev_b32 v25, v25, v26')
    e('v_lshrrev_b32 v24, 1, v24')
    for d in range(4):
        e(f'v_cmp_eq_u32 vcc, {d}, v24'); e(f'v_cndmask_b32 v{208+d}, 0, v25, vcc')
    e('v_mfma_f32_32x32x16_bf16 v[212:227], v[200:203], v[208:211], 0')
    e('v_mfma_f32_32x32x16_bf16 v[212:227], v[204:207], v[208:211], v[212:227]')
    for i in range(1, 16): e(f'v_add_f32 v212, v212, v{212+i}')
    e('v_mov_b32 v213, v212'); e('v_permlane32_swap_b32 v212, v213'); e('v_add_f32 v212, v212, v213')
    e(f's_lshl_b32 s3, {s(sWAVE)}, 6'); e(f's_add_u32 s3, s3, {L_CSP}')
    e('v_and_b32 v24, 15, v1'); e('v_lshlrev_b32 v24, 2, v24'); e('v_add_u32 v24, s3, v24')
    e(f's_mov_b64 {s(sEXEC,2)}, exec'); e('s_mov_b64 exec, 0xffff')
    e('ds_write_b32 v24, v212')
    e(f's_mov_b64 exec, {s(sEXEC,2)}')
    e('v_lshlrev_b32 v24, 2, v1'); e(f'v_add_u32 v24, {L_MISC}, v24'); e('v_mov_b32 v25, 0'); e('v_mov_b32 v26, 1.0')
    e(f'ds_write_b32 v24, v25 offset:{L_MU3 - L_MISC}'); e(f'ds_write_b32 v24, v26 offset:{L_R3 - L_MISC}')
    e('s_waitcnt lgkmcnt(0)')
    prof('pro_end')

def setup_compute():
    e(f's_and_b32 {s(sSUB)}, {s(sWAVE)}, 1'); e(f's_lshr_b32 {s(sNI)}, {s(sWAVE)}, 1')
    T = 100
    e(f'v_lshlrev_b32 v{cL16}, 4, v1')
    e(f's_mul_i32 s3, {s(sSUB)}, {32*ABLK}'); e(f'v_add_u32 v{cA_RD}, s3, v{cL16}')
    e(f'v_lshrrev_b32 v{T}, 5, v1')
    e(f'v_bfe_u32 v{T+1}, v1, 2, 2')
    e(f'v_lshlrev_b32 v{T+2}, 2, v{T}'); e(f'v_add_u32 v{T+2}, v{T+2}, v{T+1}')
    e(f'v_bfe_u32 v{T+3}, v1, 4, 1')
    e(f'v_bfe_u32 v{T+4}, v1, 1, 1')
    e(f'v_lshlrev_b32 v{T+5}, 1, v{T+3}'); e(f'v_add_u32 v{T+5}, v{T+5}, v{T+4}')
    e(f's_lshl_b32 s3, {s(sNI)}, 2'); e(f'v_add_u32 v{T+5}, s3, v{T+5}')
    e(f'v_and_b32 v{T+6}, 2, v{T+1}'); e(f'v_lshlrev_b32 v{T+6}, 1, v{T+6}'); e(f'v_xor_b32 v{T+5}, v{T+5}, v{T+6}')
    e(f'v_lshlrev_b32 v{T+5}, 4, v{T+5}')
    e(f'v_and_b32 v{T+6}, 1, v1'); e(f'v_lshlrev_b32 v{T+6}, 3, v{T+6}')
    e(f'v_lshlrev_b32 v{T+7}, 7, v{T+2}'); e(f'v_add3_u32 v{cW_RD0}, v{T+7}, v{T+5}, v{T+6}')
    e(f'v_add_u32 v{cW_RD0}, {L_W}, v{cW_RD0}'); e(f'v_add_u32 v{cW_RD1}, 0x10000, v{cW_RD0}')
    e(f'v_lshlrev_b32 v{T+7}, 6, v{T+2}'); e(f'v_lshlrev_b32 v{T+5}, 5, v{T+3}')
    e(f'v_and_b32 v{T+6}, 3, v1'); e(f'v_lshlrev_b32 v{T+6}, 3, v{T+6}')
    e(f'v_add3_u32 v{cWH_RD0}, v{T+7}, v{T+5}, v{T+6}')
    e(f'v_add_u32 v{cWH_RD0}, {L_W}, v{cWH_RD0}'); e(f'v_add_u32 v{cWH_RD1}, 0x10000, v{cWH_RD0}')
    e(f'v_and_b32 v{T+1}, 31, v1'); e(f's_lshl_b32 s3, {s(sSUB)}, 5'); e(f'v_add_u32 v{T+2}, s3, v{T+1}')
    e(f'v_lshlrev_b32 v{cROWM}, 10, v{T+2}'); e(f'v_lshlrev_b32 v{T+3}, 3, v{T}'); e(f'v_add_u32 v{cROWM}, v{cROWM}, v{T+3}')
    e(f's_lshl_b32 s3, {s(sNI)}, 6'); e(f'v_add_u32 v{cROWM}, s3, v{cROWM}')
    e(f'v_lshlrev_b32 v{cSTAT}, 3, v{T+1}'); e(f'v_mov_b32 v{T+3}, {OOB}'); e('v_cmp_gt_u32 vcc, 32, v1')
    e(f'v_cndmask_b32 v{cSTAT}, v{T+3}, v{cSTAT}, vcc')
    e(f'v_lshlrev_b32 v{cCS_T}, 4, v{T}')
    e(f'v_lshlrev_b32 v{cCS_D}, 2, v{T+1}')
    e(f'v_lshlrev_b32 v{cLST_T}, 2, v{T+2}'); e(f'v_add_u32 v{cLST_T}, {L_MISC}, v{cLST_T}')
    e(f's_lshl_b32 s3, {s(sSUB)}, 7'); e(f'v_lshlrev_b32 v{cLST_D}, 4, v{T}'); e(f'v_add_u32 v{cLST_D}, s3, v{cLST_D}')
    e(f'v_add_u32 v{cLST_D}, {L_MISC}, v{cLST_D}')
    e(f'v_bfe_u32 v{T+3}, v1, 4, 1'); e(f'v_lshlrev_b32 v{cVF}, 16, v{T+3}')
    e(f'v_lshlrev_b32 v{T+3}, 8, v{T}'); e(f'v_and_b32 v{T+4}, 15, v1'); e(f'v_lshlrev_b32 v{T+4}, 4, v{T+4}')
    e(f'v_add3_u32 v{cVF}, v{cVF}, v{T+3}, v{T+4}')

def setup_loader():
    e(f's_sub_u32 {s(sSUB)}, {s(sWAVE)}, 4')
    e(f's_lshl_b32 {s(sLW_M0)}, {s(sSUB)}, 11'); e(f's_add_u32 {s(sLW_M0)}, {s(sLW_M0)}, {L_W}')
    e(f's_lshr_b32 {s(sT0)}, {s(sSUB)}, 1'); e(f's_and_b32 {s(sT1)}, {s(sSUB)}, 1'); e(f's_lshl_b32 {s(sT1)}, {s(sT1)}, 1')
    e(f's_lshl_b32 {s(sT2)}, {s(sT0)}, 5'); e(f's_add_u32 {s(sT2)}, {s(sT2)}, {s(sT1)}'); e(f's_mul_i32 {s(sLA_M0)}, {s(sT2)}, {ABLK}')
    if L_A: e(f's_add_u32 {s(sLA_M0)}, {s(sLA_M0)}, {L_A}')
    T = 100
    e(f'v_lshlrev_b32 v{T}, 4, v1')
    e(f's_lshl_b32 s3, {s(sT2)}, 10'); e(f'v_add_u32 v{lA32}, s3, v{T}')
    e(f's_mul_i32 s3, {s(sT0)}, 112'); e(f's_add_u32 s3, s3, {s(sT1)}'); e(f's_lshl_b32 s3, s3, 10'); e(f'v_add_u32 v{lA112}, s3, v{T}')
    e(f'v_lshrrev_b32 v{T+1}, 3, v1'); e(f'v_and_b32 v{T+2}, 2, v{T+1}'); e(f'v_lshlrev_b32 v{T+2}, 1, v{T+2}')
    e(f'v_and_b32 v{T+3}, 7, v1'); e(f'v_xor_b32 v{T+3}, v{T+3}, v{T+2}'); e(f'v_lshlrev_b32 v{T+3}, 4, v{T+3}')
    e(f's_lshl_b32 s3, {s(sSUB)}, 4'); e(f'v_add_u32 v{T+1}, s3, v{T+1}')
    for reg, ldw in ((lW1024, 1024), (lW3072, 3072), (lW3584, 3584)):
        e(f'v_mul_u32_u24 v{reg}, {ldw}, v{T+1}'); e(f'v_add_u32 v{reg}, v{reg}, v{T+3}')
        e(f'v_add_u32 v{reg+1}, {8*ldw}, v{reg}')
    e(f'v_lshrrev_b32 v{T+1}, 2, v1'); e(f'v_add_u32 v{T+1}, s3, v{T+1}'); e(f'v_mul_u32_u24 v{lWH}, 3584, v{T+1}')
    e(f'v_and_b32 v{T+2}, 3, v1'); e(f'v_lshlrev_b32 v{T+2}, 4, v{T+2}'); e(f'v_add_u32 v{lWH}, v{lWH}, v{T+2}')
    e(f's_add_u32 {s(sT3)}, {s(sRT0)}, {s(sT0)}'); e(f's_lshl_b32 {s(sT3)}, {s(sT3)}, 5')
    e(f'v_and_b32 v{T+1}, 31, v1'); e(f'v_add_u32 v{T+1}, {s(sT3)}, v{T+1}')
    e(f'v_lshrrev_b32 v{T+2}, 5, v1'); e(f'v_lshlrev_b32 v{T+2}, 9, v{T+2}')
    e(f's_lshl_b32 s3, {s(sT1)}, 10'); e(f'v_add_u32 v{T+2}, s3, v{T+2}')
    e(f'v_mov_b32 v{T+6}, {OOB}')
    for k, d in enumerate((-1, 1, -2, 2)):
        e(f'v_add_u32 v{T+3}, {d}, v{T+1}')
        e(f'v_lshrrev_b32 v{T+4}, 5, v{T+3}'); e(f'v_lshlrev_b32 v{T+4}, 15, v{T+4}')
        e(f'v_and_b32 v{T+5}, 31, v{T+3}'); e(f'v_lshlrev_b32 v{T+5}, 4, v{T+5}')
        e(f'v_add3_u32 v{lASH+k}, v{T+4}, v{T+5}, v{T+2}')
        e(f'v_cmp_gt_u32 vcc, 0x800, v{T+3}')
        e(f'v_cndmask_b32 v{lASH+k}, v{T+6}, v{lASH+k}, vcc')
    e(f'v_and_b32 v{T+1}, 15, v1'); e(f's_and_b32 s3, {s(sSUB)}, 1'); e(f's_lshl_b32 s3, s3, 4'); e(f'v_add_u32 v{T+2}, s3, v{T+1}')
    e(f'v_lshlrev_b32 v{lST}, 3, v{T+2}'); e(f'v_lshrrev_b32 v{T+3}, 4, v1'); e(f'v_lshlrev_b32 v{T+3}, 10, v{T+3}')
    e(f'v_add_u32 v{lST}, v{lST}, v{T+3}'); e(f's_lshl_b32 s3, {s(sT0)}, 12'); e(f'v_add_u32 v{lST}, s3, v{lST}')
    e(f's_lshl_b32 s3, {s(sSUB)}, 4'); e(f'v_add_u32 v{lSTW}, s3, v{T+1}'); e(f'v_lshlrev_b32 v{lSTW}, 2, v{lSTW}')
    e(f'v_add_u32 v{lSTW}, {L_MISC}, v{lSTW}')
    e(f'v_and_b32 v{T+1}, 31, v1'); e(f'v_lshlrev_b32 v{T+2}, 2, v{T+1}')
    e(f's_lshl_b32 s3, {s(sG)}, 8'); e(f's_add_u32 s3, s3, {WS_LP}'); e(f'v_add_u32 v{lP_LP}, s3, v{T+2}')
    e(f'v_lshrrev_b32 v{T+3}, 2, v{T+1}'); e(f'v_lshlrev_b32 v{T+3}, 8, v{T+3}')
    e(f'v_and_b32 v{T+4}, 3, v{T+1}'); e(f'v_lshlrev_b32 v{T+4}, 5, v{T+4}')
    e(f's_lshr_b32 s3, {s(sJ)}, 2'); e(f's_lshl_b32 s3, s3, 2'); e(f's_add_u32 s3, s3, {WS_GP}')
    e(f'v_add3_u32 v{lP_S2}, v{T+3}, v{T+4}, s3')
    e(f's_mov_b32 {s(sPM_5R)}, 0'); e(f's_mov_b32 {s(sPM_5R+1)}, 0')
    e(f's_mov_b32 {s(sT4)}, {s(sG)}'); e(f's_mov_b32 {s(sT5)}, 0')
    la = e.newlabel('L5a'); lb = e.newlabel('L5b')
    e(f's_cmp_lg_u32 {s(sRB)}, 0'); e(f's_cbranch_scc1 {la}')
    e(f's_cmp_eq_u32 {s(sG)}, 0'); e(f's_cbranch_scc1 {lb}')
    e(f's_sub_u32 {s(sT4)}, {s(sG)}, 1'); e(f's_mov_b32 {s(sT5)}, 96'); e(f's_mov_b32 {s(sPM_5R)}, 0xff'); e(f's_branch {lb}')
    e.label(la)
    e(f's_cmp_lg_u32 {s(sRB)}, 3'); e(f's_cbranch_scc1 {lb}')
    e(f's_cmp_eq_u32 {s(sG)}, 7'); e(f's_cbranch_scc1 {lb}')
    e(f's_add_u32 {s(sT4)}, {s(sG)}, 1'); e(f's_mov_b32 {s(sPM_5R)}, 0xff')
    e.label(lb)
    e(f's_lshl_b32 {s(sT4)}, {s(sT4)}, 8'); e(f's_add_u32 {s(sT4)}, {s(sT4)}, {s(sT5)}'); e(f's_add_u32 {s(sT4)}, {s(sT4)}, {WS_GP}')
    e(f'v_and_b32 v{T+1}, 7, v1'); e(f'v_lshlrev_b32 v{T+1}, 2, v{T+1}'); e(f'v_add_u32 v{lP_5R}, {s(sT4)}, v{T+1}')
    e(f's_lshl_b32 s3, {s(sRB)}, 3'); e(f's_lshl_b32 {s(sPM_RB)}, 0xff, s3'); e(f's_mov_b32 {s(sPM_RB+1)}, 0')
    e(f's_lshl_b64 {s(sM64,2)}, 0xffffff, s3'); e(f's_lshr_b64 {s(sM64,2)}, {s(sM64,2)}, 8')
    e(f's_mov_b32 {s(sPM_5L)}, {s(sM64)}'); e(f's_mov_b32 {s(sPM_5L+1)}, 0')

ALL32 = 's[96:97]'

def col0(dst_s, mul, add_ni=32, extra=0):
    e(f's_mul_i32 {s(dst_s)}, {s(sCB)}, {mul}')
    e(f's_mul_i32 {s(sT7)}, {s(sNI)}, {add_ni}')
    e(f's_add_u32 {s(dst_s)}, {s(dst_s)}, {s(sT7)}')
    if extra: e(f's_add_u32 {s(dst_s)}, {s(dst_s)}, {extra}')

sTILE, sTILE2, sCOL = 98, 99, 100

def stage_S1_C():
    OUT = cU + 4
    def pre():
        col0(sCOL, 64)
        for x in cs_load_T(sCOL, CS_QKV, 0, zero_l0=True): e(x)
        e(f's_lshl_b32 {s(sTILE)}, {s(sCB)}, 2'); e(f's_lshl_b32 {s(sT0)}, {s(sNI)}, 1'); e(f's_add_u32 {s(sTILE)}, {s(sTILE)}, {s(sT0)}')
        e(f's_lshl_b32 {s(sTILE)}, {s(sTILE)}, 6'); e(f's_add_u32 {s(sTILE)}, {s(sTILE)}, {s(sRT0)}'); e(f's_add_u32 {s(sTILE)}, {s(sTILE)}, {s(sSUB)}')
        e(f's_lshl_b32 {s(sTILE)}, {s(sTILE)}, 10'); e(f's_add_u32 {s(sTILE)}, {s(sTILE)}, {s(sLB)}')
    def mid(pi, kc, fill):
        if pi == 0 and kc == 3:
            for x in read_stats_T(L_MU3, L_R3): e(x)
    def store_qk(o_buf):
        return [f's_add_u32 {s(sT0)}, {s(sTILE)}, {o_buf}\ns_add_u32 {s(sT1)}, {s(sT0)}, 65536',
                f'buffer_store_dwordx4 {v(OUT,4)}, v{cL16}, {srd(SRD_WS)}, {s(sT0)} offen sc1',
                f'buffer_store_dwordx4 {v(OUT+4,4)}, v{cL16}, {srd(SRD_WS)}, {s(sT1)} offen sc1']
    def epi_q(acc):
        o = ['s_waitcnt vmcnt(0)',
             f'v_mov_b32 v{cU}, v{cMU}', f'v_mul_f32 v{cU+1}, {fbits(QSCALE)}, v{cR}']
        o += epi_ln(acc, cT, cU)
        o += cs_load_T(sCOL, CS_QKV, 512, zero_l0=True)
        o += epi_pack(cT, OUT) + store_qk(O_QF)
        return o
    def epi_k(acc):
        o = ['s_waitcnt vmcnt(2)'] + epi_ln(acc, cT)
        o += [f's_lshl_b32 {s(sT6)}, {s(sCOL)}, 2', f's_add_u32 {s(sT6)}, {s(sT6)}, {WS_CS + CS_QKV + 4096}',
              f's_cmp_eq_u32 {s(sLAYER)}, 0\ns_cselect_b32 {s(sT6)}, {OOB}, {s(sT6)}',
              f'buffer_load_dword v{cTMP}, v{cCS_D}, {srd(SRD_WS)}, {s(sT6)} offen sc1']
        o += epi_pack(cT, OUT) + store_qk(O_KF)
        return o
    def epi_v(acc):
        o = []
        for g in range(4):
            o.append(f'ds_read_b128 {v(cCS+4*g,4)}, v{cLST_D} offset:{L_MU3 - L_MISC + g*32}')
            o.append(f'ds_read_b128 {v(cWF[0]+4*g,4)}, v{cLST_D} offset:{L_R3 - L_MISC + g*32}')
        o += ['s_waitcnt vmcnt(2) lgkmcnt(0)', f'v_mov_b32 v{cU}, v{cTMP}']
        for i in range(0, 16, 2):
            o.append(f'v_pk_fma_f32 {v(cT+i,2)}, {v(cCS+i,2)}, {v(cU,2)}, {v(acc+i,2)} op_sel_hi:[1,0,1]')
        for i in range(0, 16, 2):
            o.append(f'v_pk_mul_f32 {v(cT+i,2)}, {v(cT+i,2)}, {v(cWF[0]+i,2)}')
        o += epi_pack(cT, OUT)
        o += [f's_add_u32 {s(sT0)}, {s(sTILE)}, {O_VF}',
              f'buffer_store_dwordx4 {v(OUT,4)}, v{cVF}, {srd(SRD_WS)}, {s(sT0)} offen sc1',
              f'buffer_store_dwordx4 {v(OUT+4,4)}, v{cVF}, {srd(SRD_WS)}, {s(sT0)} offen offset:512 sc1']
        return o
    compute_stage('S1', [dict(epi=epi_q, per=2), dict(epi=epi_k, per=2), dict(epi=epi_v, swap=True, per=2)], pre=pre, mid=mid)

def res_init_prologue_wait(): e('s_waitcnt vmcnt(0)')

def stage_S3_C():
    OUT = cU + 4
    def pre():
        la = e.newlabel('LS3_af'); lb = e.newlabel('LS3_j')
        e(f's_cmp_lg_u32 {s(sLAYER)}, 0'); e(f's_cbranch_scc1 {la}')
        e(f's_lshl_b32 {s(sT0)}, {s(sRT0)}, 15'); e(f's_add_u32 {s(sT0)}, {s(sT0)}, {s(sCB128)}')
        for g in range(4):
            e(f'buffer_load_dwordx2 {v(cCS+2*g,2)}, v{cROWM}, {srd(SRD_X)}, {s(sT0)} offen offset:{g*16}')
        e(f's_branch {lb}')
        e.label(la)
        af_tile_soff(sT0, O_X3, 32)
        e(f's_sub_u32 {s(sT0)}, {s(sT0)}, {WS_LSTRIDE}')
        load_tile_af(cCS, sT0)
        e.label(lb)
        af_tile_soff(sTILE, O_X2, 32)
        e('s_waitcnt vmcnt(0)')
        for x in unpack8(cCS, cACC[0]): e(x)
    def epi(acc):
        return epi_pack(acc, OUT) + epi_store_af(OUT, sTILE) + epi_stats(acc, O_ST2)
    compute_stage('S3', [dict(epi=epi, init=True)], pre=pre)

def stage_S4_C():
    OUT = cU + 8
    def pre():
        col0(sCOL, 64)
        for x in cs_load_T(sCOL, CS_W1): e(x)
        af_tile_soff(sTILE, O_HA, 32)
        set_gelu_consts()
    def mid(pi, kc, fill):
        if kc == 3:
            for x in read_stats_T(L_MU2, L_R22): e(x)
    def epi(acc):
        return ['s_waitcnt vmcnt(0)'] + epi_ln(acc, cT) + epi_gelu(cT, cT) + epi_store_af(cT, sTILE)
    compute_stage('S4', [dict(epi=epi)], pre=pre, mid=mid)

def stage_S5_C():
    OUT = cU + 4
    def pre():
        af_tile_soff(sT0, O_X2, 32)
        load_tile_af(cCS, sT0)
        for x in read_stats_T(L_MU2, L_R2): e(x)
        af_tile_soff(sTILE, O_X1, 32)
        e('s_waitcnt vmcnt(0) lgkmcnt(0)')
        for x in unpack8(cCS, cACC[0]): e(x)
        A = cACC[0]
        for i in range(0, 16, 2):
            e(f'v_pk_add_f32 {v(A+i,2)}, {v(A+i,2)}, {v(cMU,2)} op_sel_hi:[1,0]')
        for i in range(0, 16, 2):
            e(f'v_pk_mul_f32 {v(A+i,2)}, {v(A+i,2)}, {v(cMU,2)} op_sel:[0,1] op_sel_hi:[1,1]')
    def epi(acc):
        return epi_pack(acc, OUT) + epi_store_af(OUT, sTILE) + epi_stats(acc, O_ST1)
    compute_stage('S5', [dict(epi=epi, init=True)], pre=pre)

def stage_S6_C():
    def pre():
        col0(sCOL, 224)
        for x in cs_load_T(sCOL, CS_W3): e(x)
        e(f's_add_u32 {s(sTILE)}, {s(sRT0)}, {s(sSUB)}'); e(f's_mul_i32 {s(sTILE)}, {s(sTILE)}, 112')
        e(f's_mul_i32 {s(sT0)}, {s(sCB)}, 14'); e(f's_add_u32 {s(sTILE)}, {s(sTILE)}, {s(sT0)}')
        e(f's_lshl_b32 {s(sT0)}, {s(sNI)}, 1'); e(f's_add_u32 {s(sTILE)}, {s(sTILE)}, {s(sT0)}')
        e(f's_lshl_b32 {s(sTILE)}, {s(sTILE)}, 10'); e(f's_add_u32 {s(sTILE)}, {s(sTILE)}, {s(sLB)}'); e(f's_add_u32 {s(sTILE)}, {s(sTILE)}, {O_GA}')
        set_gelu_consts()
    def mid(pi, kc, fill):
        if pi == 0 and kc == 3:
            for x in read_stats_T(L_MU1, L_R1): e(x)
    def mk(p):
        def epi(acc):
            o = [f's_waitcnt vmcnt({0 if p == 0 else 2})'] + epi_ln(acc, cT)
            if p < 3: o += cs_load_T(sCOL, CS_W3, 64 * (p + 1))
            o += epi_gelu(cT, cT)
            o += [f's_add_u32 {s(sTILE2)}, {s(sTILE)}, {p * 4096}'] + epi_store_af(cT, sTILE2)
            return o
        return epi
    compute_stage('S6', [dict(epi=mk(0), per=4), dict(epi=mk(1), per=4), dict(epi=mk(2), per=4), dict(epi=mk(3), half=True, per=4)], pre=pre, mid=mid)

def stage_S7_C():
    OUT = cU + 4
    def pre():
        af_tile_soff(sT0, O_X2, 32); load_tile_af(cCS, sT0)
        af_tile_soff(sT0, O_X1, 32); load_tile_af(cCS + 8, sT0)
        af_tile_soff(sTILE, O_X3, 32)
        e('s_waitcnt vmcnt(0)')
        for x in unpack8(cCS, cACC[0]): e(x)
        for x in unpack8(cCS + 8, cT): e(x)
        for i in range(0, 16, 2):
            e(f'v_pk_add_f32 {v(cACC[0]+i,2)}, {v(cACC[0]+i,2)}, {v(cT+i,2)}')
    def epi(acc):
        la = e.newlabel('LS7_out'); lb = e.newlabel('LS7_j')
        o = epi_pack(acc, OUT)
        o.append(f's_cmp_eq_u32 {s(sLAYER)}, {NLAYERS-1}\ns_cbranch_scc1 {la}')
        o += epi_store_af(OUT, sTILE) + epi_stats(acc, O_ST3)
        o.append(f's_branch {lb}\n{la}:')
        o.append(f's_lshl_b32 {s(sT0)}, {s(sRT0)}, 15\ns_add_u32 {s(sT0)}, {s(sT0)}, {s(sCB128)}')
        for g in range(4):
            o.append(f'buffer_store_dwordx2 {v(OUT+2*g,2)}, v{cROWM}, {srd(SRD_OUT)}, {s(sT0)} offen offset:{g*16}')
        o.append(f'{lb}:')
        return o
    compute_stage('S7', [dict(epi=epi, init=True)], pre=pre)

aKC, aVC, aKN, aVN, aKV, aWPF, aKB0, aVB0 = 20, 21, 22, 23, 24, 25, 26, 27
aQ = 28; aKB = [32, 36]; aVB = [40, 48]; aSB = [56, 72]; aP = 88; aO = 96; aT = 112
ONES = '0x3f803f80'

def attn_issue_kv(u_s):
    e(f's_add_u32 {s(sT0)}, {s(sG)}, {s(u_s)}'); e(f's_and_b32 {s(sT0)}, {s(sT0)}, 7'); e(f's_lshl_b32 {s(sT0)}, {s(sT0)}, 13')
    e(f's_add_u32 {s(sT0)}, {s(sT0)}, {s(sKOFF)}')
    e(f's_lshl_b32 {s(sT1)}, {s(sWAVE)}, 10'); e(f's_add_u32 {s(sT1)}, {s(sT1)}, {s(sSLOT)}')
    e(f's_mov_b32 m0, {s(sT1)}')
    e(f'buffer_load_dwordx4 v{aKV}, {srd(SRD_WS)}, {s(sT0)} offen sc1 lds')
    e(f's_add_u32 {s(sT0)}, {s(sT0)}, {O_VF - O_KF}'); e(f's_add_u32 m0, {s(sT1)}, 8192')
    e(f'buffer_load_dwordx4 v{aKV}, {srd(SRD_WS)}, {s(sT0)} offen sc1 lds')

def attn_w_prefetch(k):
    done = e.newlabel('Lwp_done'); w1 = e.newlabel('Lwp_1')
    e(f's_lshl_b32 {s(sT0)}, {s(sU)}, 1')
    if k: e(f's_add_u32 {s(sT0)}, {s(sT0)}, {k}')
    e(f's_cmp_ge_u32 {s(sT0)}, {NSLOT}'); e(f's_cbranch_scc1 {done}')
    e(f's_lshl_b32 {s(sT1)}, {s(sT0)}, 13'); e(f's_lshl_b32 {s(sT2)}, {s(sWAVE)}, 10'); e(f's_add_u32 {s(sT1)}, {s(sT1)}, {s(sT2)}')
    e(f's_add_u32 m0, {s(sT1)}, {L_W}')
    e(f's_and_b32 {s(sT1)}, {s(sT0)}, 7'); e(f's_lshl_b32 {s(sT1)}, {s(sT1)}, 16'); e(f's_add_u32 {s(sT1)}, {s(sT1)}, {s(sCB128)}')
    e(f's_cmp_ge_u32 {s(sT0)}, 8'); e(f's_cbranch_scc1 {w1}')
    e(f'buffer_load_dwordx4 v{aWPF}, {srd(SRD_WO)}, {s(sT1)} offen lds')
    e(f's_branch {done}')
    e.label(w1)
    e(f'buffer_load_dwordx4 v{aWPF}, {srd(SRD_W1)}, {s(sT1)} offen lds')
    e.label(done)

def attn_tile(t):
    S = aSB[t % 2]
    exp = [f'v_exp_f32 v{S+i}, v{S+i}' for i in range(16)]
    cvt = [f'v_cvt_pk_bf16_f32 v{aP+i}, v{S+2*i}, v{S+2*i+1}' for i in range(8)]
    tv = t + 1; vreg = aVC if tv < 8 else aVN; tv %= 8
    VB = aVB[(t + 1) % 2]
    e(f's_mov_b64 exec, {s(sVMASK,2)}')
    e(f'ds_read_b128 {v(VB,4)}, v{vreg} offset:{8192 + tv*1024}')
    e(f'ds_read_b128 {v(VB+4,4)}, v{vreg} offset:{8192 + tv*1024 + 512}')
    e('s_mov_b64 exec, -1')
    order = [exp[0], exp[1], exp[2], cvt[0], exp[3], exp[4], cvt[1], exp[5], exp[6], cvt[2], exp[7], exp[8], cvt[3], exp[9], exp[10]]
    for x in order: e(x)
    Vc = aVB[t % 2]
    e(f'v_mfma_f32_32x32x16_bf16 {v(aO,16)}, {v(Vc,4)}, {v(aP,4)}, {v(aO,16)}')
    for x in [cvt[4], exp[11], exp[12], cvt[5], exp[13], exp[14], cvt[6], exp[15]]: e(x)
    e('s_waitcnt lgkmcnt(0)')
    e(cvt[7])
    e(f'v_mfma_f32_32x32x16_bf16 {v(S,16)}, {v(aKB[t%2],4)}, {v(aQ,4)}, 0')
    tk = t + 3; kreg = aKC if tk < 8 else aKN; tk %= 8
    e(f'ds_read_b128 {v(aKB[(t+1)%2],4)}, v{kreg} offset:{tk*1024}')
    e(f'v_mfma_f32_32x32x16_bf16 {v(aO,16)}, {v(Vc+4,4)}, {v(aP+4,4)}, {v(aO,16)}')

def stage_S2():
    prof('S2_start')
    e(f'v_lshlrev_b32 v{aKB0}, 4, v1')
    e(f'v_lshrrev_b32 v{aT}, 5, v1'); e(f'v_lshlrev_b32 v{aT}, 8, v{aT}'); e(f'v_and_b32 v{aT+1}, 15, v1'); e(f'v_lshlrev_b32 v{aT+1}, 4, v{aT+1}')
    e(f'v_add_u32 v{aVB0}, v{aT}, v{aT+1}')
    e(f's_lshl_b32 s3, {s(sWAVE)}, 10'); e(f'v_add_u32 v{aKV}, s3, v{aKB0}')
    e(f'v_lshrrev_b32 v{aT}, 3, v1'); e(f'v_and_b32 v{aT+1}, 2, v{aT}'); e(f'v_lshlrev_b32 v{aT+1}, 1, v{aT+1}')
    e(f'v_and_b32 v{aT+2}, 7, v1'); e(f'v_xor_b32 v{aT+2}, v{aT+2}, v{aT+1}'); e(f'v_lshlrev_b32 v{aT+2}, 4, v{aT+2}')
    e(f's_lshl_b32 s3, {s(sWAVE)}, 3'); e(f'v_add_u32 v{aT}, s3, v{aT}'); e(f'v_lshlrev_b32 v{aT}, 10, v{aT}'); e(f'v_add_u32 v{aWPF}, v{aT}, v{aT+2}')
    e(f's_lshl_b32 {s(sKOFF)}, {s(sJ)}, 16'); e(f's_add_u32 {s(sKOFF)}, {s(sKOFF)}, {s(sLB)}')
    e(f's_lshl_b32 {s(sT0)}, {s(sG)}, 13'); e(f's_add_u32 {s(sT0)}, {s(sT0)}, {s(sKOFF)}')
    if O_QF: e(f's_add_u32 {s(sT0)}, {s(sT0)}, {O_QF}')
    e(f'buffer_load_dwordx4 {v(aQ,4)}, v{aKV}, {srd(SRD_WS)}, {s(sT0)} offen sc1')
    e(f's_add_u32 {s(sKOFF)}, {s(sKOFF)}, {O_KF}')
    e(f's_mov_b32 {s(sU)}, 0'); e(f's_mov_b32 {s(sSLOT)}, 0'); attn_issue_kv(sU)
    e(f's_mov_b32 {s(sU)}, 1'); e(f's_mov_b32 {s(sSLOT)}, {KV_SLOT}'); attn_issue_kv(sU)
    for i in range(8):
        e(f'v_mov_b32 v{aVB[0]+i}, {ONES}'); e(f'v_mov_b32 v{aVB[1]+i}, {ONES}')
    for i in range(16): e(f'v_mov_b32 v{aO+i}, 0')
    e(f'v_mov_b32 v{aT}, {L_FLAG}'); e(f'v_mov_b32 v{aT+1}, 0'); e(f'ds_write_b32 v{aT}, v{aT+1}')
    e(f'v_mov_b32 v{aKC}, v{aKB0}'); e(f'v_mov_b32 v{aVC}, v{aVB0}')
    e('s_waitcnt vmcnt(2) lgkmcnt(0)')
    e('s_barrier')
    e(f'ds_read_b128 {v(aKB[0],4)}, v{aKC}'); e(f'ds_read_b128 {v(aKB[1],4)}, v{aKC} offset:1024')
    e(f's_mov_b64 exec, {s(sVMASK,2)}')
    e(f'ds_read_b128 {v(aVB[0],4)}, v{aVC} offset:8192'); e(f'ds_read_b128 {v(aVB[0]+4,4)}, v{aVC} offset:{8192+512}')
    e('s_mov_b64 exec, -1')
    e('s_waitcnt lgkmcnt(0)')
    e(f'v_mfma_f32_32x32x16_bf16 {v(aSB[0],16)}, {v(aKB[0],4)}, {v(aQ,4)}, 0')
    e(f'v_mfma_f32_32x32x16_bf16 {v(aSB[1],16)}, {v(aKB[1],4)}, {v(aQ,4)}, 0')
    e(f'ds_read_b128 {v(aKB[0],4)}, v{aKC} offset:2048')
    e(f's_mov_b32 {s(sU)}, 0'); e(f's_mov_b32 {s(sCNT)}, 0')
    e('s_nop 7')
    e.label('L_ATT_LOOP')
    e(f's_add_u32 {s(sT0)}, {s(sCNT)}, 1'); e(f's_cmp_eq_u32 {s(sT0)}, 3'); e(f's_cselect_b32 {s(sT0)}, 0, {s(sT0)}')
    e(f's_lshl_b32 {s(sT1)}, {s(sT0)}, 14')
    e(f'v_add_u32 v{aKN}, {s(sT1)}, v{aKB0}'); e(f'v_add_u32 v{aVN}, {s(sT1)}, v{aVB0}')
    for t in range(8):
        if t == 5:
            e('s_waitcnt vmcnt(0)'); e('s_barrier')
            attn_w_prefetch(0); attn_w_prefetch(1)
            e(f's_add_u32 {s(sT3)}, {s(sCNT)}, 2'); e(f's_cmp_ge_u32 {s(sT3)}, 3'); e(f's_cselect_b32 {s(sT4)}, 3, 0')
            e(f's_sub_u32 {s(sT3)}, {s(sT3)}, {s(sT4)}'); e(f's_lshl_b32 {s(sSLOT)}, {s(sT3)}, 14')
            e(f's_add_u32 {s(sT5)}, {s(sU)}, 2')
            attn_issue_kv(sT5)
        attn_tile(t)
    e(f'v_mov_b32 v{aKC}, v{aKN}'); e(f'v_mov_b32 v{aVC}, v{aVN}')
    e(f's_add_u32 {s(sCNT)}, {s(sCNT)}, 1'); e(f's_cmp_eq_u32 {s(sCNT)}, 3'); e(f's_cselect_b32 {s(sCNT)}, 0, {s(sCNT)}')
    e(f's_add_u32 {s(sU)}, {s(sU)}, 1'); e(f's_cmp_lt_u32 {s(sU)}, 8'); e('s_cbranch_scc1 L_ATT_LOOP')
    prof('S2_loop_end')
    attn_finish()
    z = aT + 12
    e(f'v_mul_f32 v{z}, 0, v{aO}')
    for i in range(1, 8): e(f'v_fma_f32 v{z}, v{aO+i}, 0, v{z}')
    e(f'v_cmp_eq_f32 vcc, 0, v{z}')
    e(f's_mov_b32 {s(sT2)}, {fbits(2.0**-30)}'); e(f's_mov_b32 {s(sT3)}, {fbits(2.0**40)}')
    e(f'v_cmp_le_f32 {s(sM64,2)}, {s(sT2)}, v{aO+8}'); e(f's_and_b64 vcc, vcc, {s(sM64,2)}')
    e(f'v_cmp_ge_f32 {s(sM64,2)}, {s(sT3)}, v{aO+8}'); e(f's_and_b64 vcc, vcc, {s(sM64,2)}')
    ok = e.newlabel('Latt_ok')
    if not FORCE_SLOW:
        e('s_cmp_eq_u64 vcc, -1'); e(f's_cbranch_scc1 {ok}')
    e(f'v_mov_b32 v{aT}, {L_FLAG}'); e(f'v_mov_b32 v{aT+1}, 1'); e(f'ds_write_b32 v{aT}, v{aT+1}')
    e.label(ok)
    e('s_waitcnt vmcnt(0) lgkmcnt(0)')
    e('s_barrier')
    e(f'v_mov_b32 v{aT}, {L_FLAG}'); e(f'ds_read_b32 v{aT+1}, v{aT}'); e('s_waitcnt lgkmcnt(0)')
    e(f'v_readfirstlane_b32 {s(sT0)}, v{aT+1}')
    e(f's_cmp_eq_u32 {s(sT0)}, 0'); e('s_cbranch_scc1 L_ATT_DONE')
    attn_slow()
    e.label('L_ATT_DONE')
    prof('S2_end')

def attn_finish():
    e(f'v_rcp_f32 v{aT}, v{aO+8}')
    for i in range(0, 8, 2):
        e(f'v_pk_mul_f32 {v(aT+2+i,2)}, {v(aO+i,2)}, {v(aT,2)} op_sel_hi:[1,0]')
    for i in range(4):
        e(f'v_cvt_pk_bf16_f32 v{aP+i}, v{aT+2+2*i}, v{aT+3+2*i}')
    e(f's_lshl_b32 {s(sT0)}, {s(sG)}, 3'); e(f's_add_u32 {s(sT0)}, {s(sT0)}, {s(sWAVE)}'); e(f's_lshl_b32 {s(sT0)}, {s(sT0)}, 5')
    e(f's_add_u32 {s(sT0)}, {s(sT0)}, {s(sJ)}'); e(f's_lshl_b32 {s(sT0)}, {s(sT0)}, 10')
    e(f's_add_u32 {s(sT0)}, {s(sT0)}, {s(sLB)}'); e(f's_add_u32 {s(sT0)}, {s(sT0)}, {O_OA}')
    e(f'buffer_store_dwordx4 {v(aP,4)}, v{aKB0}, {srd(SRD_WS)}, {s(sT0)} offen sc1')

def attn_slow():
    S = aSB[0]; M = aT + 10; MN = aT + 11; AL = aT + 12; X = aT + 13
    for i in range(16): e(f'v_mov_b32 v{aO+i}, 0')
    e(f'v_mov_b32 v{M}, 0xff800000')
    e(f's_mov_b32 {s(sU)}, 0')
    e.label('L_SLOW_LOOP')
    e(f's_lshl_b32 {s(sT0)}, {s(sU)}, 10'); e(f's_add_u32 {s(sT0)}, {s(sT0)}, {s(sKOFF)}')
    e(f'buffer_load_dwordx4 {v(aKB[0],4)}, v{aKB0}, {srd(SRD_WS)}, {s(sT0)} offen sc1')
    e(f's_add_u32 {s(sT0)}, {s(sT0)}, {O_VF - O_KF}')
    e(f's_mov_b64 exec, {s(sVMASK,2)}')
    e(f'buffer_load_dwordx4 {v(aVB[0],4)}, v{aVB0}, {srd(SRD_WS)}, {s(sT0)} offen sc1')
    e(f'buffer_load_dwordx4 {v(aVB[0]+4,4)}, v{aVB0}, {srd(SRD_WS)}, {s(sT0)} offen offset:512 sc1')
    e('s_mov_b64 exec, -1')
    e('s_waitcnt vmcnt(0)')
    e(f'v_mfma_f32_32x32x16_bf16 {v(S,16)}, {v(aKB[0],4)}, {v(aQ,4)}, 0')
    e(f'v_max3_f32 v{MN}, v{S}, v{S+1}, v{S+2}')
    for i in range(3, 15, 2): e(f'v_max3_f32 v{MN}, v{MN}, v{S+i}, v{S+i+1}')
    e(f'v_max_f32 v{MN}, v{MN}, v{S+15}')
    e(f'v_mov_b32 v{X}, v{MN}'); e(f'v_permlane32_swap_b32 v{MN}, v{X}'); e(f'v_max3_f32 v{MN}, v{MN}, v{X}, v{M}')
    e(f'v_sub_f32 v{AL}, v{M}, v{MN}'); e(f'v_exp_f32 v{AL}, v{AL}'); e(f'v_mov_b32 v{M}, v{MN}')
    for i in range(16):
        e(f'v_sub_f32 v{S+i}, v{S+i}, v{MN}'); e(f'v_exp_f32 v{S+i}, v{S+i}')
    for i in range(8): e(f'v_cvt_pk_bf16_f32 v{aP+i}, v{S+2*i}, v{S+2*i+1}')
    for i in range(16): e(f'v_mul_f32 v{aO+i}, v{aO+i}, v{AL}')
    e(f'v_mfma_f32_32x32x16_bf16 {v(aO,16)}, {v(aVB[0],4)}, {v(aP,4)}, {v(aO,16)}')
    e(f'v_mfma_f32_32x32x16_bf16 {v(aO,16)}, {v(aVB[0]+4,4)}, {v(aP+4,4)}, {v(aO,16)}')
    e('s_nop 7'); e('s_nop 7')
    e(f's_add_u32 {s(sU)}, {s(sU)}, 1'); e(f's_cmp_lt_u32 {s(sU)}, 64'); e('s_cbranch_scc1 L_SLOW_LOOP')
    attn_finish()
    e('s_waitcnt vmcnt(0)')
    e('s_barrier')

def trans_L(pubs, polls, extra=None):
    def body():
        for arr, cnt, sc1 in pubs: publish(arr, cnt, sc1)
        if extra: extra()
        for addr, mask, cnt in polls: poll(addr, mask, cnt)
    only_wave4(body)
    e('s_barrier')

def startup_wait():
    skip = e.newlabel('Lsu_skip'); top = e.newlabel('Lsu'); done = e.newlabel('Lsu_done')
    e(f's_cmp_lg_u32 {s(sLAYER)}, 0'); e(f's_cbranch_scc1 {skip}')
    T = lT + 4
    e(f'v_and_b32 v{T}, 7, v1'); e(f'v_lshlrev_b32 v{T}, 3, v{T}')
    e(f's_mov_b32 {s(sSPIN)}, 0x40000')
    e.label(top)
    e(f'buffer_load_dwordx2 {v(T+2,2)}, v{T}, {srd(SRD_DBG)}, 0 offen sc1')
    e('s_waitcnt vmcnt(0)')
    e(f'v_sad_u8 v{T+4}, v{T+2}, 0, 0'); e(f'v_sad_u8 v{T+4}, v{T+3}, 0, v{T+4}')
    e(f'v_cmp_eq_u32 vcc, 32, v{T+4}')
    e('s_cmp_eq_u64 vcc, -1'); e(f's_cbranch_scc1 {done}')
    e(f's_sub_u32 {s(sSPIN)}, {s(sSPIN)}, 1'); e(f's_cmp_lg_u32 {s(sSPIN)}, 0'); e(f's_cbranch_scc1 {top}')
    e(f's_mov_b32 {s(sDEAD)}, 1')
    e.label(done)
    e(f'v_bcnt_u32_b32 v{T+4}, v{T+2}, 0'); e(f'v_bcnt_u32_b32 v{T+4}, v{T+3}, v{T+4}')
    e(f'v_readlane_b32 {s(sT0)}, v{T+4}, {s(sG)}')
    e(f's_cmp_eq_u32 {s(sT0)}, 1'); e(f's_cselect_b32 {s(sFAST)}, {0 if FORCE_SAFE else 1}, 0')
    e.label(skip)

def main():
    prologue()
    e.label('L_LAYER')
    e(f's_cmp_ge_u32 {s(sWAVE)}, 4'); e('s_cbranch_scc1 L_S1_L')
    b0 = e.nbar; stage_S1_C(); e('s_barrier'); nC1 = e.nbar - b0
    e('s_branch L_S2')
    e.label('L_S1_L')
    b0 = e.nbar
    loader_stage('S1', 24, ('af', O_X3, 32, lA32), stats=(O_ST3, L_MU3, L_R3))
    prof('S1_E1')
    trans_L([(WS_GP, 1, True)], [(lP_S2, ALL32, 1)], extra=startup_wait)
    nL1 = e.nbar - b0
    assert nC1 == nL1, (nC1, nL1)
    e.label('L_S2')
    stage_S2()
    e(f's_cmp_ge_u32 {s(sWAVE)}, 4'); e('s_cbranch_scc1 L_S3_L')
    b0 = e.nbar
    for fn in (stage_S3_C, stage_S4_C, stage_S5_C, stage_S6_C, stage_S7_C):
        e('s_barrier')
        fn()
    e(f's_cmp_eq_u32 {s(sLAYER)}, {NLAYERS-1}'); e('s_cbranch_scc1 L_END')
    e('s_barrier')
    nC = e.nbar - b0
    e('s_branch L_NEXT')
    e.label('L_S3_L')
    b0 = e.nbar
    RB = s(sPM_RB, 2)
    trans_L([(WS_LP, 2, False)], [(lP_LP, ALL32, 2)]); prof('S3_start')
    loader_stage('S3', 8, ('af', O_OA, 32, lA32)); prof('S3_E1')
    trans_L([(WS_LP, 3, False)], [(lP_LP, RB, 3)]); prof('S4_start')
    loader_stage('S4', 8, ('af', O_X2, 32, lA32), stats=(O_ST2, L_MU2, L_R2, L_R22)); prof('S4_E1')
    trans_L([(WS_GP, 4, True), (WS_LP, 4, False)], [(lP_LP, s(sPM_5L, 2), 4), (lP_5R, s(sPM_5R, 2), 4)]); prof('S5_start')
    loader_stage('S5', 8, ('shift', O_HA, 32)); prof('S5_E1')
    trans_L([(WS_LP, 5, False)], [(lP_LP, RB, 5)]); prof('S6_start')
    loader_stage('S6', 32, ('af', O_X1, 32, lA32), stats=(O_ST1, L_MU1, L_R1)); prof('S6_E1')
    trans_L([(WS_LP, 6, False)], [(lP_LP, RB, 6)]); prof('S7_start')
    loader_stage('S7', 28, ('af', O_GA, 112, lA112)); prof('S7_E1')
    fin = e.newlabel('Lfin')
    e(f's_cmp_eq_u32 {s(sLAYER)}, {NLAYERS-1}'); e(f's_cbranch_scc1 {fin}')
    trans_L([(WS_LP, 7, False)], [(lP_LP, RB, 7)])
    nL = e.nbar - b0
    assert nC == nL, (nC, nL)
    e.label('L_NEXT')
    e(f's_add_u32 {s(sLAYER)}, {s(sLAYER)}, 1'); e(f's_add_u32 {s(sC)}, {s(sC)}, 8'); e(f's_add_u32 {s(sLB)}, {s(sLB)}, {WS_LSTRIDE}')
    e('s_branch L_LAYER')
    e.label(fin)
    e('s_waitcnt vmcnt(0)')
    e.label('L_END')
    e('s_endpgm')

def build_file(path):
    main_text = None
    main()
    body = e.text()
    hdr = open(os.path.join(os.path.dirname(os.path.abspath(__file__)), 'header.txt')).read()
    hdr = hdr.replace('@LDS@', str(LDS_SIZE))
    ftr = f'''.section .rodata,"a"
.p2align 6
.amdhsa_kernel {KNAME}
  .amdhsa_next_free_vgpr 256
  .amdhsa_next_free_sgpr 102
  .amdhsa_accum_offset 256
  .amdhsa_group_segment_fixed_size 0
  .amdhsa_kernarg_size 88
  .amdhsa_user_sgpr_count 2
  .amdhsa_user_sgpr_kernarg_segment_ptr 1
  .amdhsa_system_sgpr_workgroup_id_x 1
  .amdhsa_float_denorm_mode_32 3
.end_amdhsa_kernel
'''
    open(path, 'w').write(hdr + body + ftr)
    print('instructions:', sum(1 for i in e.items if i.kind != 'none'), 'nops inserted:', e.inserted, 'prof tags:', prof.tags)

if __name__ == '__main__':
    build_file(sys.argv[1])
```
